```python
import torch

def _softmax(x, axis=-1):
    return torch.softmax(x, dim=axis)
def _gelu(x):
    return torch.nn.functional.gelu(x, approximate="tanh")
def _silu(x):
    return torch.nn.functional.silu(x)
def _sigmoid(x):
    return torch.sigmoid(x)
def _layernorm(x, axis=-1, eps=1e-5):
    m = x.mean(dim=axis, keepdim=True)
    v = x.var(dim=axis, keepdim=True, unbiased=False)
    return (x - m) / torch.sqrt(v + eps)
def _scatter_add(tgt, idx, src, axis=0):
    return tgt.clone().index_add_(axis, idx, src)
def _segment_sum(src, seg, n):
    out = torch.zeros((n,) + src.shape[1:], dtype=src.dtype)
    return out.index_add_(0, seg, src)
def _pad(x, pw):
    flat = tuple(v for pair in reversed(pw) for v in pair)
    return torch.nn.functional.pad(x, flat)

kernel_name = 'concat_heads__linear_attn_block__ssm_conv_s5__prompt'

def setup_inputs():

    _w = (lambda a: (lambda t: t.to(torch.bfloat16) if t.is_floating_point() else t)(torch.as_tensor(a)))
    def _A_setup():
        B, S, D = 1, 2048, 640
        return {
            "x": _w((lambda *s: torch.randn(*s, dtype=torch.bfloat16) * 0.05)(B, S, D)),
            "wqkv": _w((lambda *s: torch.randn(*s, dtype=torch.bfloat16) * 0.4)(D, 3 * D)),
            "wo": _w((lambda *s: torch.randn(*s, dtype=torch.bfloat16) * 0.05)(D, D)),
        }
    _A_in = _A_setup()

    def _B_setup():
        B, S, D = 1, 2048, 640
        P = D
        Lambda_re = -0.5 * (lambda _x: torch.exp(torch.as_tensor(_x)))((lambda *s: torch.randn(*s, dtype=torch.bfloat16) * 0.2)(P))
        Lambda_im = (lambda *s: torch.randn(*s, dtype=torch.bfloat16) * 0.8)(P) * 1.0
        B_re = (lambda *s: torch.randn(*s, dtype=torch.bfloat16) * 0.4)(P, D) * (D ** -0.5)
        B_im = (lambda *s: torch.randn(*s, dtype=torch.bfloat16) * 0.2)(P, D) * (D ** -0.5)
        C_re = (lambda *s: torch.randn(*s, dtype=torch.bfloat16) * 0.2)(D, P) * (P ** -0.5)
        C_im = (lambda *s: torch.randn(*s, dtype=torch.bfloat16) * 0.4)(D, P) * (P ** -0.5)
        log_dt = (lambda *s: torch.randn(*s, dtype=torch.bfloat16) * 0.2)(P) * 0.3 - 2.0
        Dskip = (lambda *s: torch.randn(*s, dtype=torch.bfloat16) * 0.05)(D)
        return {
            "x": _w((lambda *s: torch.randn(*s, dtype=torch.bfloat16) * 0.05)(B, S, D)),
            "Lambda_re": _w(Lambda_re),
            "Lambda_im": _w(Lambda_im),
            "B_re": _w(B_re),
            "B_im": _w(B_im),
            "C_re": _w(C_re),
            "C_im": _w(C_im),
            "log_dt": _w(log_dt),
            "Dskip": _w(Dskip),
        }
    _B_in = _B_setup()

    return {
        "A_x": _A_in["x"],
        "A_wqkv": _A_in["wqkv"],
        "A_wo": _A_in["wo"],
        "B_x": _B_in["x"],
        "B_Lambda_re": _B_in["Lambda_re"],
        "B_Lambda_im": _B_in["Lambda_im"],
        "B_B_re": _B_in["B_re"],
        "B_B_im": _B_in["B_im"],
        "B_C_re": _B_in["C_re"],
        "B_C_im": _B_in["C_im"],
        "B_log_dt": _B_in["log_dt"],
        "B_Dskip": _B_in["Dskip"],
    }

def reference(A_x, A_wqkv, A_wo, B_x, B_Lambda_re, B_Lambda_im, B_B_re, B_B_im, B_C_re, B_C_im, B_log_dt, B_Dskip):
    def _A_ref(x, wqkv, wo):
        B, S, D = x.shape
        H = 32; Dh = D // H
        qkv = (lambda x, *d: x.permute(*d))((x @ wqkv).reshape(B, S, 3, H, Dh), 2, 0, 3, 1, 4)
        q, k, v = qkv[0], qkv[1], qkv[2]
        phi = lambda t: torch.where(t > 0, t + 1, torch.exp(t)) + 1e-6
        pq, pk = phi(q), phi(k)
        kv = torch.einsum("bhsd,bhse->bhde", pk, v)
        z = torch.einsum("bhsd->bhd", pk)
        num = torch.einsum("bhqd,bhde->bhqe", pq, kv)
        den = torch.einsum("bhqd,bhd->bhq", pq, z)[..., None] + 1e-6
        o = num / den
        return (lambda x, *d: x.permute(*d))(o, 0, 2, 1, 3).reshape(B, S, D) @ wo

    def _B_ref(x, Lambda_re, Lambda_im, B_re, B_im, C_re, C_im, log_dt, Dskip):
        Bsz, L, H = x.shape
        Lam = Lambda_re + 1j * Lambda_im
        Bmat = B_re + 1j * B_im
        Cmat = C_re + 1j * C_im
        dt = torch.exp(log_dt)
        Lam_bar = torch.exp(dt * Lam)
        B_bar = ((Lam_bar - 1.0) / Lam)[:, None] * Bmat
        Bu = torch.einsum("bld,pd->blp", x + 0j, B_bar)
        h = torch.zeros_like(Bu[:, 0, :])
        hs = []
        for t in range(L):
            h = Lam_bar[None, :] * h + Bu[:, t, :]
            hs.append(h)
        hseq = torch.stack(hs, 1)
        y = 2.0 * torch.einsum("blp,dp->bld", hseq, Cmat).real + x * Dskip[None, None, :]
        return y

    a = _A_ref(A_x, A_wqkv, A_wo)
    b = _B_ref(B_x, B_Lambda_re, B_Lambda_im, B_B_re, B_B_im, B_C_re, B_C_im, B_log_dt, B_Dskip)
    return torch.concatenate([a, b], axis=-1)
```

```python
import re

TRANS = ('v_exp_f32', 'v_log_f32', 'v_rcp_f32', 'v_rsq_f32', 'v_sqrt_f32', 'v_sin_f32', 'v_cos_f32', 'v_rcp_iflag_f32')
_REG = re.compile(r'(?<![\w.])(-|abs\()?([vsa])(?:(\d+)|\[(\d+):(\d+)\])')


def regs_of(op):
    out = set()
    op = op.strip()
    if op in ('vcc', 'vcc_lo', 'vcc_hi'):
        return {('s', 'vcc')}
    if op in ('exec', 'exec_lo', 'exec_hi'):
        return {('s', 'exec')}
    if op == 'm0':
        return {('s', 'm0')}
    m = _REG.match(op)
    if m:
        k = m.group(2)
        if m.group(3) is not None:
            out.add((k, int(m.group(3))))
        else:
            for r in range(int(m.group(4)), int(m.group(5)) + 1):
                out.add((k, r))
    return out


class Ins:
    def __init__(self, text):
        self.text = text
        t = text.split(';')[0].strip()
        self.label = None
        self.mn = None
        self.kind = 'other'
        self.w = set()
        self.r = set()
        self.srcC = set()
        self.srcAB = set()
        self.target = None
        self.states = 1
        self.dpp = False
        self.storedata = set()
        if not t:
            self.kind = 'comment'
            self.states = 0
            return
        if t.endswith(':'):
            self.label = t[:-1]
            self.kind = 'label'
            self.states = 0
            return
        if t.startswith('.'):
            self.kind = 'directive'
            self.states = 0
            return
        parts = t.split(None, 1)
        mn = parts[0]
        self.mn = mn
        rest = parts[1] if len(parts) > 1 else ''
        ops = [o.strip() for o in rest.split(',')] if rest else []
        mods = ''
        clean = []
        depth_open = False
        for o in ops:
            clean.append(o)
        ops = []
        cur = ''
        d = 0
        for ch in rest:
            if ch in '[(':
                d += 1
            if ch in '])':
                d -= 1
            if ch == ',' and d == 0:
                ops.append(cur.strip())
                cur = ''
            else:
                cur += ch
        if cur.strip():
            ops.append(cur.strip())
        if ops:
            last = ops[-1].split(None, 1)
            ops[-1] = last[0]
            mods = last[1] if len(last) > 1 else ''
        self.ops = ops
        self.mods = mods
        R = [regs_of(o) for o in ops]
        base = re.sub(r'_e(32|64)$|_dpp$|_sdwa$', '', mn)
        self.base = base
        if 'quad_perm' in mods or 'row_' in mods or 'wave_' in mods or mn.endswith('_dpp'):
            self.dpp = True
        if mn.startswith('v_mfma'):
            self.kind = 'mfma'
            self.w = set(R[0])
            self.srcAB = R[1] | R[2]
            self.srcC = set(R[3])
            self.r = self.srcAB | self.srcC
            if '16x16x32' in mn:
                self.passes = 4
            elif '32x32x16' in mn:
                self.passes = 8
            else:
                raise ValueError('unknown mfma ' + mn)
        elif mn.startswith('v_'):
            self.kind = 'valu'
            self.r |= {('s', 'exec')}
            if base.startswith('v_cmp'):
                self.w = set(R[0])
                for x in R[1:]:
                    self.r |= x
            elif base in ('v_swap_b32', 'v_permlane16_swap_b32', 'v_permlane32_swap_b32'):
                self.w = R[0] | R[1]
                self.r |= R[0] | R[1]
            elif base in ('v_add_co_u32', 'v_sub_co_u32', 'v_div_scale_f32', 'v_addc_co_u32'):
                self.w = R[0] | R[1]
                for x in R[2:]:
                    self.r |= x
            else:
                self.w = set(R[0])
                for x in R[1:]:
                    self.r |= x
                if base in ('v_fmac_f32', 'v_pk_fmac_f16', 'v_writelane_b32') or self.dpp:
                    self.r |= R[0]
                if base == 'v_div_fmas_f32':
                    self.r |= {('s', 'vcc')}
        elif mn.startswith('ds_'):
            self.kind = 'ds'
            if mn.startswith('ds_read') or mn.startswith('ds_bpermute') or mn.startswith('ds_swizzle'):
                self.w = set(R[0])
                for x in R[1:]:
                    self.r |= x
            else:
                for x in R:
                    self.r |= x
        elif mn.startswith('buffer_') or mn.startswith('global_'):
            self.kind = 'vmem'
            islds = re.search(r'\blds\b', mods) is not None
            self.lds = islds
            if mn in ('buffer_wbl2', 'buffer_inv'):
                pass
            elif '_load' in mn and not islds:
                self.w = set(R[0])
                for x in R[1:]:
                    self.r |= x
            else:
                for x in R:
                    self.r |= x
                if islds:
                    self.r |= {('s', 'm0')}
                if '_store' in mn and ('x3' in mn or 'x4' in mn):
                    self.storedata = R[0] if mn.startswith('buffer_') else R[1]
        elif mn.startswith('s_'):
            if mn == 's_nop':
                self.kind = 'nop'
                self.states = int(ops[0], 0) + 1
            elif mn.startswith('s_cbranch') or mn == 's_branch':
                self.kind = 'branch'
                self.target = ops[0]
            elif mn in ('s_waitcnt', 's_barrier', 's_endpgm', 's_setprio', 's_sleep'):
                self.kind = 'other'
            elif mn.startswith('s_load') or mn in ('s_memtime', 's_memrealtime'):
                self.kind = 'smem'
                self.w = set(R[0])
                for x in R[1:]:
                    self.r |= x
            elif mn.startswith('s_cmp') or mn.startswith('s_bitcmp'):
                self.kind = 'salu'
                for x in R:
                    self.r |= x
            else:
                self.kind = 'salu'
                self.w = set(R[0])
                for x in R[1:]:
                    self.r |= x
                if 'saveexec' in mn:
                    self.w |= {('s', 'exec')}
        else:
            raise ValueError('unknown instruction ' + text)


def _v(s):
    return {x for x in s if x[0] == 'v'}


def _s(s):
    return {x for x in s if x[0] == 's'}


def need(p, c):
    n = 0
    if p.kind == 'valu':
        pw = _v(p.w)
        if pw:
            if c.kind == 'mfma' and pw & c.r:
                n = max(n, 2)
            if c.kind == 'valu':
                if p.base in TRANS and c.base not in TRANS and pw & c.r:
                    n = max(n, 1)
                if (c.base.startswith('v_permlane') or c.dpp) and pw & c.r:
                    n = max(n, 2)
                if c.base in ('v_readfirstlane_b32', 'v_readlane_b32') and pw & c.r:
                    n = max(n, 1)
        sw = _s(p.w)
        if sw:
            if c.kind == 'valu' and (sw - {('s', 'exec')}) & c.r:
                n = max(n, 4 if c.base in ('v_readlane_b32', 'v_writelane_b32', 'v_div_fmas_f32') else 2)
            if c.kind == 'vmem' and sw & c.r:
                n = max(n, 5)
    if p.kind == 'mfma':
        big = {4: 8, 8: 12}[p.passes]
        if c.kind == 'valu' and p.w & (c.r | c.w):
            n = max(n, big)
        if c.kind in ('ds', 'vmem') and p.w & (c.r | c.w):
            n = max(n, big)
        if c.kind == 'mfma':
            if p.w & c.srcAB:
                n = max(n, big)
            if p.w & c.srcC and not (p.w == c.srcC and p.passes == c.passes):
                n = max(n, big - 2)
            if p.w & c.w and not (p.w == c.srcC):
                n = max(n, big - 2)
        if c.kind == 'valu' and p.srcC & c.w:
            n = max(n, {4: 3, 8: 7}[p.passes])
    if p.kind == 'vmem' and p.storedata:
        if c.kind == 'valu' and p.storedata & c.w:
            n = max(n, 2)
        elif p.storedata & c.w:
            n = max(n, 1)
    if p.kind == 'salu' and ('s', 'm0') in p.w and c.kind == 'vmem' and getattr(c, 'lds', False):
        n = max(n, 1)
    return n


MAXD = 12


def hazard_pass(lines):
    ins = [Ins(l) for l in lines]
    inserted = 0
    while True:
        labels = {x.label: i for i, x in enumerate(ins) if x.label}
        jumps = {}
        for i, x in enumerate(ins):
            if x.kind == 'branch':
                jumps.setdefault(labels[x.target], []).append(i)

        def preds(i):
            out = []
            if i > 0 and ins[i - 1].mn not in ('s_branch', 's_endpgm'):
                out.append(i - 1)
            out += jumps.get(i, [])
            return out
        fix = None
        for i, c in enumerate(ins):
            if c.kind not in ('valu', 'mfma', 'ds', 'vmem'):
                continue
            worst = 0
            stack = [(p, 0) for p in preds(i)]
            seen = {}
            while stack:
                p, d = stack.pop()
                if seen.get(p, 99) <= d:
                    continue
                seen[p] = d
                x = ins[p]
                if x.kind in ('valu', 'mfma', 'vmem', 'salu'):
                    r = need(x, c)
                    if r > d:
                        worst = max(worst, r - d)
                d2 = d + x.states
                if d2 < MAXD:
                    for q in preds(p):
                        stack.append((q, d2))
            if worst:
                fix = (i, worst)
                break
        if not fix:
            break
        i, w = fix
        ins.insert(i, Ins(f'    s_nop {w - 1}'))
        inserted += 1
    return [x.text for x in ins], inserted


class Asm:
    def __init__(self):
        self.lines = []
        self._n = 0

    def __call__(self, text):
        for l in text.split('\n'):
            l = l.strip()
            if not l:
                continue
            self.lines.append(l if l.endswith(':') else '    ' + l)

    def label(self, name):
        self.lines.append(name + ':')

    def uniq(self, base):
        self._n += 1
        return f'{base}_{self._n}'


class Cnt:
    def __init__(self, asm, name, maxv):
        self.a = asm
        self.name = name
        self.max = maxv
        self.q = []
        self.done = 0

    def issue(self, tag=None):
        self.q.append(tag)

    def wait(self, tag):
        idx = max(i for i, t in enumerate(self.q) if t == tag)
        if idx < self.done:
            return
        n = len(self.q) - 1 - idx
        if n > self.max:
            n = self.max
        self.a(f's_waitcnt {self.name}({n})')
        self.done = len(self.q) - n

    def waitall(self):
        self.a(f's_waitcnt {self.name}(0)')
        self.done = len(self.q)


def vr(a, n=1):
    return f'v{a}' if n == 1 else f'v[{a}:{a + n - 1}]'


def sr(a, n=1):
    return f's{a}' if n == 1 else f's[{a}:{a + n - 1}]'
```

```python
import sys, struct
from asmlib import Asm, Cnt, hazard_pass, vr, sr

NAME = 'concat_heads__linear_attn_block__ssm_conv_s5__prompt'

WS_FLAG = 0x1000
WS_AGG = 0x10000
WS_KVP = 0x30000
WS_O = 0x100000
WS_H = 0x400000
WS_STAMP = 0x1000000
WS_DUMP = 0x1100000
WS_SIZE = 0x10000000
OOB = 0x7fff0000
SPIN = 200000

P_AX, P_WQKV, P_WO, P_BX, P_LRE, P_LIM, P_BRE, P_BIM = 4, 6, 8, 10, 12, 14, 16, 18
P_CRE, P_CIM, P_LDT, P_DSK, P_OUT, P_DBG, P_WS = 20, 22, 24, 26, 28, 30, 32
S_WAVE, S_SIDE = 34, 35
SRD0, SRD1, SRD2, SRDW = 36, 40, 44, 48
S_CH, S_G, S_I4, S_W, S_TAG = 52, 53, 54, 55, 56
S_KC, S_SLOT = 57, 58
S_T0, S_T1, S_T2, S_T3, S_T4, S_T5 = 59, 60, 61, 62, 63, 64
S_CNT, S_SPIN, S_FAST = 65, 66, 67
S_M = 68
S_XCC = 76
S_ST = 80


def f2u(x):
    return struct.unpack('<I', struct.pack('<f', x))[0]


LOG2E = 1.4426950408889634


class Gen:
    def __init__(self, **opt):
        self.o = dict(stamps=False, dump=None, fast=True, prewarm=True, outx='', codepf=True, rot=True)
        self.o.update(opt)
        self.a = Asm()

    def srd(self, s, ptr, size):
        a = self.a
        a(f's_mov_b32 s{s}, s{ptr}\ns_mov_b32 s{s+1}, s{ptr+1}\ns_mov_b32 s{s+2}, {size}\ns_mov_b32 s{s+3}, 0x20000')

    def stamp(self, k):
        if self.o['stamps']:
            self.a(f's_memtime s[{S_ST+2*k}:{S_ST+2*k+1}]\ns_waitcnt lgkmcnt(0)')

    def finish(self):
        a = self.a
        if self.o['stamps']:
            self.stamp(9)
            a(f's_lshl_b32 s{S_T0}, s2, 3\ns_add_u32 s{S_T0}, s{S_T0}, s{S_WAVE}\ns_lshl_b32 s{S_T0}, s{S_T0}, 6\ns_add_u32 s{S_T0}, s{S_T0}, {WS_STAMP}')
            a('s_mov_b64 exec, 1\nv_mov_b32 v1, 0')
            for k in range(10):
                a(f'v_mov_b32 v2, s{S_ST+2*k}\nbuffer_store_dword v2, v1, s[{SRDW}:{SRDW+3}], s{S_T0} offen offset:{4*k}')
            a(f'v_mov_b32 v2, s78\nbuffer_store_dword v2, v1, s[{SRDW}:{SRDW+3}], s{S_T0} offen offset:40')
        a('s_endpgm')

    def dump(self, name, regs):
        if self.o['dump'] != name:
            return
        a = self.a
        a(f's_lshl_b32 s{S_T0}, s2, 2\ns_add_u32 s{S_T0}, s{S_T0}, s{S_W}\ns_lshl_b32 s{S_T0}, s{S_T0}, 16\ns_add_u32 s{S_T0}, s{S_T0}, {WS_DUMP}')
        a('s_nop 7\ns_nop 7\nv_lshlrev_b32 v255, 2, v0')
        for n, r in enumerate(regs):
            a(f'buffer_store_dword v{r}, v255, s[{SRDW}:{SRDW+3}], s{S_T0} offen\ns_add_u32 s{S_T0}, s{S_T0}, 256')
        a('s_waitcnt vmcnt(0)')

    def execmask(self, m):
        a = self.a
        lo, hi = m & 0xffffffff, m >> 32
        if m == (1 << 64) - 1:
            a('s_mov_b64 exec, -1')
        else:
            a(f's_mov_b32 exec_lo, {lo:#x}\ns_mov_b32 exec_hi, {hi:#x}')

    def div10(self, dst_q, dst_r, src, tmp=None):
        a = self.a
        a(f'v_mul_u32_u24 v{dst_q}, 6554, v{src}\nv_lshrrev_b32 v{dst_q}, 16, v{dst_q}')
        a(f'v_mad_i32_i24 v{dst_r}, v{dst_q}, -10, v{src}')

    def period_offsets(self, base):
        a = self.a
        a(f's_mul_i32 s{S_T0}, s{S_G}, 160')
        for n in range(5):
            a(f'v_add_u32 v250, {64*n}, v0')
            self.div10(251, 252, 250)
            a(f'v_mul_u32_u24 v251, 1280, v251\nv_lshl_add_u32 v251, v252, 4, v251\nv_add_u32 v{base+n}, s{S_T0}, v251')

    def start_chunk(self, dst):
        a = self.a
        if not self.o['rot']:
            a(f's_mov_b32 s{dst}, 0')
            return
        a(f's_mul_i32 s{dst}, s{S_I4}, 5\ns_add_u32 s{dst}, s{dst}, 1\ns_lshr_b32 s{dst}, s{dst}, 1')
        a(f's_mul_i32 s{S_T0}, s{S_G}, 5\ns_lshr_b32 s{S_T0}, s{S_T0}, 2\ns_add_u32 s{dst}, s{dst}, s{S_T0}')
        a(f's_cmp_ge_u32 s{dst}, 10\ns_cselect_b32 s{S_T0}, 10, 0\ns_sub_u32 s{dst}, s{dst}, s{S_T0}')

    def next_kc(self):
        a = self.a
        a(f's_add_u32 s{S_KC}, s{S_KC}, 1\ns_cmp_eq_u32 s{S_KC}, 10\ns_cselect_b32 s{S_KC}, 0, s{S_KC}')

    def make_tag(self):
        self.a(f's_mul_i32 s{S_TAG}, s{S_TAG}, 1664525\ns_add_u32 s{S_TAG}, s{S_TAG}, 1013904223')

    def flag_base(self, dst):
        a = self.a
        a(f's_lshl_b32 s{dst}, s{S_SIDE}, 4\ns_add_u32 s{dst}, s{dst}, s{S_CH}\ns_lshl_b32 s{dst}, s{dst}, 10\ns_add_u32 s{dst}, s{dst}, {WS_FLAG}')

    def publish_xcc(self):
        a = self.a
        L = a.uniq('L_nox')
        a(f's_cmp_lg_u32 s{S_W}, 3\ns_cbranch_scc1 {L}')
        self.flag_base(S_T0)
        a(f's_lshl_b32 s{S_T1}, s{S_G}, 2\ns_add_u32 s{S_T0}, s{S_T0}, s{S_T1}')
        a(f's_xor_b32 s{S_T1}, s{S_TAG}, s{S_XCC}\nv_mov_b32 v250, s{S_T1}\nv_mov_b32 v251, 512\ns_mov_b64 exec, 1')
        a(f'buffer_store_dword v250, v251, s[{SRDW}:{SRDW+3}], s{S_T0} offen sc1\ns_mov_b64 exec, -1')
        a.label(L)

    def spin_check(self, top, done):
        a = self.a
        a(f's_add_u32 s{S_SPIN}, s{S_SPIN}, 1\ns_cmp_lt_u32 s{S_SPIN}, {SPIN}\ns_cbranch_scc1 {top}')

    def xcc_check(self, vt):
        a = self.a
        top = a.uniq('L_xp')
        ok = a.uniq('L_xok')
        self.flag_base(S_T4)
        a(f's_lshl_b32 s{S_T5}, s{S_W}, 7\ns_add_u32 s{S_T5}, s{S_T5}, s{S_T4}\ns_add_u32 s{S_T4}, s{S_T4}, 512')
        a(f's_mov_b64 exec, 0xff\nv_lshlrev_b32 v{vt}, 2, v0\ns_mov_b32 s{S_SPIN}, 0')
        a(f'buffer_load_dword v{vt+2}, v{vt}, s[{SRDW}:{SRDW+3}], s{S_T5} offen sc1')
        a.label(top)
        a(f'buffer_load_dword v{vt+1}, v{vt}, s[{SRDW}:{SRDW+3}], s{S_T4} offen sc1\ns_waitcnt vmcnt(0)')
        a(f'v_xor_b32 v{vt+1}, s{S_TAG}, v{vt+1}\nv_cmp_le_u32 vcc, 16, v{vt+1}\ns_cbranch_vccz {ok}')
        self.spin_check(top, ok)
        a.label(ok)
        a(f'v_cmp_ne_u32 vcc, s{S_XCC}, v{vt+1}\ns_nop 0\ns_cmp_eq_u64 vcc, 0\ns_cselect_b32 s{S_FAST}, 1, 0\ns_mov_b64 exec, -1')
        if not self.o['fast']:
            a(f's_mov_b32 s{S_FAST}, 0')

    def hop2(self, vt):
        a = self.a
        slow, go, top, ok, done = (a.uniq(x) for x in ('L_slow', 'L_go', 'L_fp', 'L_fok', 'L_fdone'))
        self.flag_base(S_T4)
        a(f's_lshl_b32 s{S_T5}, s{S_W}, 7\ns_add_u32 s{S_T4}, s{S_T4}, s{S_T5}')
        a(f's_lshl_b32 s{S_T5}, s{S_G}, 2\ns_add_u32 s{S_T5}, s{S_T5}, s{S_T4}')
        a(f'v_mov_b32 v{vt}, s{S_TAG}\nv_mov_b32 v{vt+1}, 0\nv_lshlrev_b32 v{vt+2}, 2, v0\ns_mov_b32 s{S_SPIN}, 0')
        a(f's_waitcnt vmcnt(0)\ns_mov_b64 exec, 1\ns_cmp_eq_u32 s{S_FAST}, 0\ns_cbranch_scc1 {slow}')
        a(f'buffer_store_dword v{vt}, v{vt+1}, s[{SRDW}:{SRDW+3}], s{S_T5} offen\ns_branch {go}')
        a.label(slow)
        a(f'buffer_wbl2 sc1\ns_waitcnt vmcnt(0)\nbuffer_store_dword v{vt}, v{vt+1}, s[{SRDW}:{SRDW+3}], s{S_T5} offen sc1')
        a.label(go)
        a('s_mov_b64 exec, 0xff')
        return (top, ok, done)

    def hop2_wait(self, vt, labels):
        a = self.a
        top, ok, done = labels
        a('s_mov_b64 exec, 0xff')
        a.label(top)
        a(f'buffer_load_dword v{vt+1}, v{vt+2}, s[{SRDW}:{SRDW+3}], s{S_T4} offen sc1\ns_waitcnt vmcnt(0)')
        a(f'v_cmp_ne_u32 vcc, s{S_TAG}, v{vt+1}\ns_cbranch_vccz {ok}')
        self.spin_check(top, ok)
        a.label(ok)
        a(f's_mov_b64 exec, -1\ns_cmp_eq_u32 s{S_FAST}, 1\ns_cbranch_scc1 {done}')
        a('buffer_inv sc1\ns_waitcnt vmcnt(0)')
        a.label(done)

    def epoch_update(self, chunk):
        a = self.a
        L = a.uniq('L_noep')
        a(f's_or_b32 s{S_T0}, s{S_G}, s{S_W}\ns_cmp_lg_u32 s{S_T0}, 0\ns_cbranch_scc1 {L}')
        a(f's_cmp_lg_u32 s{S_CH}, {chunk}\ns_cbranch_scc1 {L}')
        a(f's_lshl_b32 s{S_T0}, s{S_SIDE}, 8\nv_mov_b32 v250, s{S_TAG}\nv_mov_b32 v251, 0\ns_mov_b64 exec, 1')
        a(f'buffer_store_dword v250, v251, s[{SRDW}:{SRDW+3}], s{S_T0} offen\ns_mov_b64 exec, -1')
        a.label(L)

    def out_stores(self, acc, coff):
        a = self.a
        self.srd(SRD2, P_OUT, 2048 * 1280 * 4)
        a(f'v_lshrrev_b32 v250, 4, v0\nv_mul_u32_u24 v250, {4*5120}, v250\nv_and_b32 v251, 15, v0\nv_lshl_add_u32 v250, v251, 2, v250')
        a(f's_lshl_b32 s{S_T0}, s{S_CH}, 2\ns_add_u32 s{S_T0}, s{S_T0}, s{S_W}\ns_mul_i32 s{S_T0}, s{S_T0}, {32*5120}')
        a(f's_mul_i32 s{S_T1}, s{S_G}, 320\ns_add_u32 s{S_T0}, s{S_T0}, s{S_T1}')
        if coff:
            a(f's_add_u32 s{S_T0}, s{S_T0}, {coff}')
        for rb in range(2):
            for r in range(4):
                for j in range(5):
                    a(f'buffer_store_dword v{acc(j, rb)+r}, v250, s[{SRD2}:{SRD2+3}], s{S_T0} offen offset:{64*j} {self.o["outx"]}')
                if (rb, r) != (1, 3):
                    a(f's_add_u32 s{S_T0}, s{S_T0}, {5120 if r < 3 else 13*5120}')

    def prologue(self):
        a = self.a
        a('s_cmp_ge_u32 s2, 256\ns_cbranch_scc1 L_exit')
        a('s_load_dwordx16 s[4:19], s[0:1], 0\ns_load_dwordx8 s[20:27], s[0:1], 64\ns_load_dwordx4 s[28:31], s[0:1], 96\ns_load_dwordx2 s[32:33], s[0:1], 112')
        if self.o['stamps']:
            a(f's_memrealtime s[78:79]\ns_memtime s[{S_ST}:{S_ST+1}]')
            for k in range(1, 10):
                a(f's_mov_b32 s{S_ST+2*k}, 0')
        a(f'v_lshrrev_b32 v1, 6, v0\nv_and_b32 v0, 63, v0\nv_readfirstlane_b32 s{S_WAVE}, v1')
        a(f's_and_b32 s{S_T0}, s2, 7\ns_lshr_b32 s{S_T1}, s2, 3\ns_lshr_b32 s{S_SIDE}, s{S_T0}, 2')
        a(f's_lshr_b32 s{S_I4}, s{S_T1}, 3\ns_and_b32 s{S_G}, s{S_T1}, 7')
        a(f's_and_b32 s{S_T0}, s{S_T0}, 3\ns_lshl_b32 s{S_CH}, s{S_T0}, 2\ns_add_u32 s{S_CH}, s{S_CH}, s{S_I4}')
        a(f's_getreg_b32 s{S_XCC}, hwreg(HW_REG_XCC_ID, 0, 4)')
        a(f's_and_b32 s{S_W}, s{S_WAVE}, 3')
        a(f's_cmp_eq_u32 s{S_SIDE}, 1\ns_cbranch_scc1 L_B')
        a(f's_cmp_ge_u32 s{S_WAVE}, 4\ns_cbranch_scc1 L_AL\ns_branch L_AC')
        a.label('L_exit')
        a('s_endpgm')
        a.label('L_B')
        a(f's_cmp_ge_u32 s{S_WAVE}, 4\ns_cbranch_scc1 L_BL\ns_branch L_BC')

    def load_epoch(self):
        a = self.a
        a(f's_lshl_b32 s{S_T0}, s{S_SIDE}, 8\ns_load_dword s{S_TAG}, s[{P_WS}:{P_WS+1}], s{S_T0}')

    def x_offsets(self, base, permuted):
        a = self.a
        a(f's_lshl_b32 s{S_T0}, s{S_CH}, 2\ns_add_u32 s{S_T0}, s{S_T0}, s{S_W}\ns_mul_i32 s{S_T0}, s{S_T0}, {32*1280}')
        a('v_lshrrev_b32 v250, 4, v0\nv_and_b32 v251, 7, v0\nv_xor_b32 v250, v250, v251\nv_lshlrev_b32 v250, 4, v250')
        if not permuted:
            a('v_lshrrev_b32 v251, 3, v0')
            step = lambda n: 8 * n
        else:
            a('v_lshrrev_b32 v251, 5, v0\nv_lshlrev_b32 v251, 3, v251\nv_bfe_u32 v252, v0, 3, 1\nv_lshl_add_u32 v251, v252, 2, v251')
            a('v_bfe_u32 v252, v0, 4, 1\nv_add_u32 v251, v251, v252')
            step = lambda n: 16 * (n & 1) + 2 * (n >> 1)
        a(f'v_mul_u32_u24 v251, 1280, v251\nv_add_u32 v251, s{S_T0}, v251')
        a('v_xor_b32 v252, 64, v250\nv_add_u32 v250, v250, v251\nv_add_u32 v252, v252, v251')
        for n in range(4):
            src = 252 if n & 1 else 250
            a(f'v_add_u32 v{base+n}, {step(n)*1280}, v{src}')

    def code_prefetch(self, first, last):
        if not self.o['codepf']:
            return
        a = self.a
        L = a.uniq('L_pc')
        a(f's_getpc_b64 s[{S_M}:{S_M+1}]')
        a.label(L)
        a(f's_sub_u32 s{S_M}, s{S_M}, {L}-{first}\ns_subb_u32 s{S_M+1}, s{S_M+1}, 0')
        a(f's_lshl_b32 s{S_T0}, s{S_I4}, 3\ns_add_u32 s{S_T0}, s{S_T0}, s{S_G}\ns_lshl_b32 s{S_T0}, s{S_T0}, 7')
        a(f'v_lshlrev_b32 v249, 12, v0\nv_add_u32 v249, s{S_T0}, v249\nv_cmp_gt_u32 vcc, {last}-{first}, v249')
        S = a.uniq('L_pcs')
        a(f's_and_saveexec_b64 s[{S_M+2}:{S_M+3}], vcc\ns_cbranch_execz {S}')
        a(f'global_load_dword v255, v249, s[{S_M}:{S_M+1}]')
        a.label(S)
        a('s_mov_b64 exec, -1')

    def mainloop(self, nblk, acc, XF, WR, vXA, vWA, wread, swapped, slotsize, nslots, release_wait, LEAD=7):
        a = self.a
        R = 10
        NF = 2 * nblk
        assert NF % R == 0
        q = Cnt(a, 'lgkmcnt', 15)

        def rd_x(ks, tagc):
            for rb in range(2):
                a(f'ds_read_b128 {vr(XF+8*ks+4*rb, 4)}, v{vXA+ks} offset:{2048*rb}')
                q.issue(('x', tagc, ks))

        def rd_w(n, tagc):
            ks, j = divmod(n, nblk)
            if j == 0:
                rd_x(ks, tagc)
            for _ in range(wread(n % NF, WR + 4 * (n % R))):
                q.issue(('w', tagc, n))

        def advance():
            a(f's_add_u32 s{S_SLOT}, s{S_SLOT}, 1\ns_cmp_eq_u32 s{S_SLOT}, {nslots}')
            a(f's_cselect_b32 s{S_T0}, {-(nslots-1)*slotsize & 0xffffffff:#x}, s{S_T1}\ns_cselect_b32 s{S_SLOT}, 0, s{S_SLOT}')
            for v in [vXA, vXA + 1] + vWA:
                a(f'v_add_u32 v{v}, s{S_T0}, v{v}')
        bar = NF - LEAD
        pos = {}
        for m in range(LEAD, NF):
            pos[m] = m - LEAD
        if release_wait:
            for k, m in enumerate(range(NF - 4, NF)):
                pos[m] = bar - 4 + k // 2
        a(f's_mov_b32 s{S_SLOT}, 0\ns_mov_b32 s{S_CNT}, 0\ns_mov_b32 s{S_T1}, {slotsize}\ns_barrier')
        self.stamp(1)
        for m in range(LEAD):
            rd_w(m, 0)
        texts = []
        for it in range(3):
            start = len(a.lines)
            for n in range(NF):
                ks, j = divmod(n, nblk)
                if n == bar:
                    if release_wait:
                        q.waitall()
                    a('s_barrier')
                    advance()
                    rd_w(0, it + 1)
                q.wait(('w', it, n))
                if j == 0:
                    q.wait(('x', it, ks))
                w = vr(WR + 4 * (n % R), 4)
                for rb in range(2):
                    x = vr(XF + 8 * ks + 4 * rb, 4)
                    d = vr(acc(j, rb), 4)
                    if swapped(j):
                        a(f'v_mfma_f32_16x16x32_bf16 {d}, {w}, {x}, {d}')
                    else:
                        a(f'v_mfma_f32_16x16x32_bf16 {d}, {x}, {w}, {d}')
                for m in range(LEAD, NF):
                    if pos[m] == n:
                        rd_w(m, it)
                if n >= bar and n + 1 - bar < LEAD:
                    rd_w(n + 1 - bar, it + 1)
            texts.append(a.lines[start:])
            del a.lines[start:]
        assert texts[1] == texts[2]
        body = texts[1]
        if texts[0] != texts[1]:
            a('s_waitcnt lgkmcnt(0)')
        L = a.uniq('L_main')
        a('.p2align 3')
        a.label(L)
        a.lines += body
        a(f's_add_u32 s{S_CNT}, s{S_CNT}, 1\ns_cmp_lt_u32 s{S_CNT}, 10\ns_cbranch_scc1 {L}')
        a('s_waitcnt lgkmcnt(0)')

    A_PART = 0
    A_KVB = 27648
    A_WO = 61440

    def a_publish(self, vt):
        a = self.a
        a(f's_mul_i32 s{S_T0}, s{S_WAVE}, 40\nv_add_u32 v{vt}, s{S_T0}, v0\nv_mul_u32_u24 v{vt+1}, 24, v{vt}\nv_lshlrev_b32 v{vt}, 4, v{vt}')
        self.execmask((1 << 40) - 1)
        T = vt + 2
        for w in range(4):
            for k in range(3):
                a(f'ds_read_b64 {vr(T+6*w+2*k, 2)}, v{vt+1} offset:{self.A_PART+6720*w+8*k}')
        a(f's_lshl_b32 s{S_T1}, s{S_G}, 4\ns_add_u32 s{S_T1}, s{S_T1}, s{S_CH}\ns_mul_i32 s{S_T1}, s{S_T1}, 4480\ns_add_u32 s{S_T1}, s{S_T1}, {WS_KVP}')
        a(f'v_mov_b32 v{T+27}, s{S_TAG}')
        a('s_waitcnt lgkmcnt(6)')
        for k in range(3):
            a(f'v_pk_add_f32 {vr(T+2*k, 2)}, {vr(T+2*k, 2)}, {vr(T+6+2*k, 2)}')
        a('s_waitcnt lgkmcnt(0)')
        for k in range(3):
            a(f'v_pk_add_f32 {vr(T+12+2*k, 2)}, {vr(T+12+2*k, 2)}, {vr(T+18+2*k, 2)}')
        for k in range(3):
            a(f'v_pk_add_f32 {vr(T+2*k, 2)}, {vr(T+2*k, 2)}, {vr(T+12+2*k, 2)}')
        for k in range(3):
            a(f'v_cvt_pk_bf16_f32 v{T+24+k}, v{T+2*k}, v{T+2*k+1}')
        a(f'buffer_store_dwordx4 {vr(T+24, 4)}, v{vt}, s[{SRDW}:{SRDW+3}], s{S_T1} offen sc1')
        a('s_mov_b64 exec, -1')

    def a_gather(self, vaddr, vt):
        a = self.a
        top, ok = a.uniq('L_gp'), a.uniq('L_gok')
        D = vt
        ACC = vt + 64
        TMP = vt + 70
        BAD = vt + 76
        self.execmask((1 << 40) - 1)
        a(f's_mul_i32 s{S_T1}, s{S_G}, {16*4480}\ns_add_u32 s{S_T1}, s{S_T1}, {WS_KVP}\ns_mov_b32 s{S_SPIN}, 0')
        a(f's_mov_b32 s{S_T3}, 0xffff0000')
        a.label(top)
        for n in range(16):
            a(f's_lshl_b32 s{S_T0}, s{S_I4}, 2\ns_add_u32 s{S_T0}, s{S_T0}, {n}\ns_and_b32 s{S_T0}, s{S_T0}, 15\ns_mul_i32 s{S_T0}, s{S_T0}, 4480\ns_add_u32 s{S_T0}, s{S_T0}, s{S_T1}')
            a(f'buffer_load_dwordx4 {vr(D+4*n, 4)}, v{vaddr}, s[{SRDW}:{SRDW+3}], s{S_T0} offen sc1')
        for n in range(16):
            a(f's_waitcnt vmcnt({15-n})')
            dst = ACC if n == 0 else TMP
            for k in range(3):
                a(f'v_lshlrev_b32 v{dst+2*k}, 16, v{D+4*n+k}\nv_and_b32 v{dst+2*k+1}, s{S_T3}, v{D+4*n+k}')
            if n == 0:
                a(f'v_xor_b32 v{BAD}, s{S_TAG}, v{D+3}')
            else:
                a(f'v_bitop3_b32 v{BAD}, v{BAD}, s{S_TAG}, v{D+4*n+3} bitop3:0xf6')
                for k in range(3):
                    a(f'v_pk_add_f32 {vr(ACC+2*k, 2)}, {vr(ACC+2*k, 2)}, {vr(TMP+2*k, 2)}')
        a(f'v_cmp_ne_u32 vcc, 0, v{BAD}\ns_cbranch_vccz {ok}')
        self.spin_check(top, ok)
        a.label(ok)
        for k in range(3):
            a(f'v_cvt_pk_bf16_f32 v{TMP+k}, v{ACC+2*k}, v{ACC+2*k+1}')
        a(f'v_lshrrev_b32 v{BAD}, 2, v{vaddr}\nv_mul_u32_u24 v{BAD}, 3, v{BAD}')
        for k in range(3):
            a(f'ds_write_b32 v{BAD}, v{TMP+k} offset:{self.A_KVB+4*k}')
        a('s_mov_b64 exec, -1\ns_waitcnt lgkmcnt(0)')

    def a_loader(self):
        a = self.a
        SLOT = 47104
        VX, VW, VP = 1, 5, 13
        a.label('L_AL')
        self.x_offsets(VX, False)
        self.start_chunk(S_KC)
        a(f's_lshr_b32 s{S_T0}, s{S_W}, 1\ns_lshl_b32 s{S_T0}, s{S_T0}, 5\ns_and_b32 s{S_T1}, s{S_W}, 1\ns_lshl_b32 s{S_T1}, s{S_T1}, 2')
        a(f's_add_u32 s{S_T0}, s{S_T0}, s{S_T1}\ns_mul_i32 s{S_T0}, s{S_T0}, 3840\ns_mul_i32 s{S_T1}, s{S_G}, 160\ns_add_u32 s{S_T2}, s{S_T0}, s{S_T1}')
        a(f's_movk_i32 s{S_T3}, 3840\ns_movk_i32 s{S_T4}, 1120')
        for n in range(8):
            a(f'v_add_u32 v250, {64*n}, v0\nv_mul_u32_u24 v251, 2185, v250\nv_lshrrev_b32 v251, 16, v251')
            a('v_mul_u32_u24 v252, 30, v251\nv_sub_u32 v252, v250, v252')
            a('v_mul_u32_u24 v253, 26, v252\nv_lshrrev_b32 v253, 8, v253')
            a('v_and_b32 v250, -4, v251\nv_add_u32 v251, v251, v250')
            a(f'v_lshlrev_b32 v252, 4, v252\nv_mad_u32_u24 v252, v253, s{S_T4}, v252\nv_mad_u32_u24 v252, v251, s{S_T3}, v252')
            a(f'v_add_u32 v{VW+n}, s{S_T2}, v252')
        a(f's_lshl_b32 s{S_M+4}, s{S_W}, 12\ns_mul_i32 s{S_M+5}, s{S_W}, 7680\ns_add_u32 s{S_M+5}, s{S_M+5}, 16384\ns_mov_b32 s{S_SLOT}, 0')
        a('s_waitcnt lgkmcnt(0)')
        self.load_epoch()
        self.srd(SRD0, P_AX, 2048 * 1280)
        self.srd(SRD1, P_WQKV, 640 * 3840)
        self.srd(SRD2, P_WO, 640 * 1280)
        self.srd(SRDW, P_WS, WS_SIZE)

        def issue():
            a(f's_lshl_b32 s{S_T0}, s{S_KC}, 7\ns_mul_i32 s{S_T1}, s{S_KC}, 245760')
            a(f's_add_u32 s{S_T2}, s{S_SLOT}, s{S_M+4}\ns_add_u32 s{S_T3}, s{S_SLOT}, s{S_M+5}')
            for n in range(4):
                a(f's_add_u32 m0, s{S_T2}, {1024*n}\nbuffer_load_dwordx4 v{VX+n}, s[{SRD0}:{SRD0+3}], s{S_T0} offen lds')
            for n in range(8):
                if n == 7:
                    a('s_mov_b32 exec_hi, 0')
                a(f's_add_u32 m0, s{S_T3}, {1024*n}\nbuffer_load_dwordx4 v{VW+n}, s[{SRD1}:{SRD1+3}], s{S_T1} offen lds')
            a('s_mov_b64 exec, -1')
            self.next_kc()
            a(f's_add_u32 s{S_SLOT}, s{S_SLOT}, {SLOT}\ns_cmp_eq_u32 s{S_SLOT}, {3*SLOT}\ns_cselect_b32 s{S_SLOT}, 0, s{S_SLOT}')
        self.stamp(1)
        Lp = a.uniq('L_ap')
        a(f's_mov_b32 s{S_CNT}, 0')
        a.label(Lp)
        issue()
        a(f's_add_u32 s{S_CNT}, s{S_CNT}, 1\ns_cmp_lt_u32 s{S_CNT}, 3\ns_cbranch_scc1 {Lp}')
        Lskip = a.uniq('L_asteady')
        a(f's_cmp_gt_u32 s{S_CNT}, 3\ns_cbranch_scc1 {Lskip}')
        self.stamp(6)
        a('s_waitcnt vmcnt(24)')
        self.stamp(7)
        a('s_barrier')
        a.label(Lskip)
        a('s_waitcnt vmcnt(12)\ns_barrier')
        a(f's_cmp_lt_u32 s{S_CNT}, 10\ns_cbranch_scc1 {Lp}')
        self.period_offsets(VP)
        a('s_waitcnt lgkmcnt(0)')
        self.make_tag()
        nyoung = 0

        def wo_period(sreg):
            a(f's_mul_i32 s{S_T0}, s{sreg}, {32*1280}\ns_mul_i32 s{S_T1}, s{sreg}, 5120\ns_add_u32 s{S_T1}, s{S_T1}, {self.A_WO}')
            for n in range(5):
                a(f's_add_u32 m0, s{S_T1}, {1024*n}\nbuffer_load_dwordx4 v{VP+n}, s[{SRD2}:{SRD2+3}], s{S_T0} offen lds')
        wo_period(S_W)
        a('s_waitcnt vmcnt(5)\ns_barrier')
        self.publish_xcc()
        if self.o['prewarm']:
            a(f's_lshl_b32 s{S_T0}, s{S_CH}, 2\ns_add_u32 s{S_T0}, s{S_T0}, s{S_W}\ns_lshl_b32 s{S_T0}, s{S_T0}, 3\ns_add_u32 s{S_T0}, s{S_T0}, s{S_G}')
            a(f's_mul_i32 s{S_T0}, s{S_T0}, 5120\ns_add_u32 s{S_T0}, s{S_T0}, {WS_O}\nv_lshlrev_b32 v250, 7, v0')
            self.execmask((1 << 40) - 1)
            a(f'buffer_load_dword v255, v250, s[{SRDW}:{SRDW+3}], s{S_T0} offen sc1\ns_mov_b64 exec, -1')
        Lw = a.uniq('L_wo')
        a(f's_mov_b32 s{S_CNT}, 0')
        a.label(Lw)
        a(f's_add_u32 s{S_T2}, s{S_CNT}, s{S_I4}\ns_and_b32 s{S_T2}, s{S_T2}, 3\ns_add_u32 s{S_T2}, s{S_T2}, 1\ns_lshl_b32 s{S_T2}, s{S_T2}, 2\ns_add_u32 s{S_T2}, s{S_T2}, s{S_W}')
        wo_period(S_T2)
        a(f's_add_u32 s{S_CNT}, s{S_CNT}, 1\ns_cmp_lt_u32 s{S_CNT}, 4\ns_cbranch_scc1 {Lw}')
        a('s_barrier')
        self.stamp(2)
        a('s_barrier')
        self.stamp(3)
        L3 = a.uniq('L_a3')
        a(f's_cmp_eq_u32 s{S_W}, 3\ns_cbranch_scc1 {L3}')
        self.a_publish(20)
        self.stamp(4)
        self.a_gather(20, 60)
        a.label(L3)
        a('s_waitcnt vmcnt(0)')
        self.stamp(5)
        a('s_barrier')
        self.finish()

    def a_compute(self):
        a = self.a
        acc = lambda j, rb: 8 + 4 * (2 * j + rb)
        XF, WR = 128, 144
        vXA, vWA = 1, 3
        VC = 4
        a.label('L_AC')
        a('v_and_b32 v250, 15, v0\nv_lshrrev_b32 v251, 4, v0\nv_lshrrev_b32 v252, 1, v250\nv_xor_b32 v252, v252, v251')
        a(f's_lshl_b32 s{S_T0}, s{S_W}, 12\nv_lshlrev_b32 v252, 4, v252\nv_lshl_add_u32 v252, v250, 7, v252\nv_add_u32 v{vXA}, s{S_T0}, v252')
        a(f'v_xor_b32 v{vXA+1}, 64, v{vXA}')
        a('v_lshrrev_b32 v252, 2, v0\nv_mul_u32_u24 v252, 480, v252\nv_and_b32 v253, 3, v0\nv_lshl_add_u32 v252, v253, 3, v252')
        a(f'v_add_u32 v{vWA}, 16384, v252')
        a(f'v_mov_b32 v{VC}, {f2u(LOG2E):#x}\nv_mov_b32 v{VC+1}, {f2u(-1e-6*LOG2E):#x}\nv_mov_b32 v{VC+2}, {f2u(1e-6):#x}')
        for j in range(15):
            for rb in range(2):
                for r in range(4):
                    a(f'v_mov_b32 v{acc(j, rb)+r}, ' + (f'v{VC+2}' if j < 10 else '0'))
        a('s_waitcnt lgkmcnt(0)')
        self.load_epoch()
        self.srd(SRDW, P_WS, WS_SIZE)
        a(f's_cmp_lg_u32 s{S_W}, 0\ns_cbranch_scc1 L_ac_nopf')
        self.code_prefetch('L_AL', 'L_BL')
        a.label('L_ac_nopf')
        a('s_waitcnt lgkmcnt(0)')
        self.make_tag()

        def wread(n, reg):
            ks, j = divmod(n, 15)
            for t in range(2):
                a(f'ds_read_b64_tr_b16 {vr(reg+2*t, 2)}, v{vWA} offset:{(32*ks+16*t)*480+32*j}')
            return 2
        self.mainloop(15, acc, XF, WR, vXA, [vWA], wread, lambda j: j < 5, 47104, 3, True)
        self.stamp(2)
        self.dump('a_acc', range(8, 128))

        def phi(j, dst):
            T = 240
            for rb in range(2):
                A = acc(j, rb)
                t = T + 4 * rb
                for h in range(2):
                    a(f'v_pk_fma_f32 {vr(t+2*h, 2)}, {vr(A+2*h, 2)}, {vr(VC, 2)}, {vr(VC, 2)} op_sel:[0,0,1] op_sel_hi:[1,0,1]')
            for rb in range(2):
                A = acc(j, rb)
                t = T + 4 * rb
                for r in range(4):
                    a(f'v_exp_f32_e64 v{t+r}, v{t+r} clamp\nv_max_f32 v{A+r}, v{A+r}, v{VC+2}')
            for rb in range(2):
                A = acc(j, rb)
                t = T + 4 * rb
                for h in range(2):
                    a(f'v_pk_add_f32 {vr(A+2*h, 2)}, {vr(A+2*h, 2)}, {vr(t+2*h, 2)}')
            for rb in range(2):
                A = acc(j, rb)
                for h in range(2):
                    a(f'v_cvt_pk_bf16_f32 v{dst(rb, h)}, v{A+2*h}, v{A+2*h+1}')
        PK, VF, ONES, PD = 128, 148, 168, 172
        for j in range(5):
            for rb in range(2):
                for h in range(2):
                    A = acc(10 + j, rb)
                    a(f'v_cvt_pk_bf16_f32 v{VF+4*j+2*rb+h}, v{A+2*h}, v{A+2*h+1}')
        for r in range(4):
            a(f'v_mov_b32 v{ONES+r}, 0x3f803f80')
        a(f's_mul_i32 s{S_T0}, s{S_W}, 6720\nv_and_b32 v250, 15, v0\nv_lshrrev_b32 v251, 4, v0\nv_lshlrev_b32 v251, 4, v251\nv_add_u32 v251, s{S_T0}, v251')
        a(f'v_mul_u32_u24 v252, 80, v250\nv_add_u32 v1, v251, v252\nv_mul_u32_u24 v252, 1600, v250\nv_add_u32 v2, v251, v252')
        head = lambda x: x // 20
        pieces = [(j, b) for b in range(5) for j in range(5) if any(head(16*j+i) == head(16*b+4*g) for i in range(16) for g in range(4))]
        assert len(pieces) == 13

        def kvmask(j, b):
            return sum(1 << (16*g+i) for i in range(16) for g in range(4) if head(16*j+i) == head(16*b+4*g))
        res = {}
        nres = 0
        pend = []

        def flush_writes():
            for (kind, j, b, reg) in pend:
                if kind == 'kv':
                    self.execmask(kvmask(j, b))
                    a(f'ds_write_b128 v1, {vr(reg, 4)} offset:{self.A_PART+1280*j+64*b}')
                else:
                    self.execmask(sum(1 << (16*g+head(16*b+4*g)) for g in range(4)))
                    a(f'ds_write_b128 v2, {vr(reg, 4)} offset:{self.A_PART+1600+64*b}')
            pend.clear()
            a('s_mov_b64 exec, -1')
        for b in range(5):
            phi(5 + b, lambda rb, h: PK + 4 * b + 2 * rb + h)
            flush_writes()
            for (j, bb) in pieces:
                if bb != b:
                    continue
                reg = PD + 4 * (nres % 8)
                nres += 1
                a(f'v_mfma_f32_16x16x32_bf16 {vr(reg, 4)}, {vr(PK+4*b, 4)}, {vr(VF+4*j, 4)}, 0')
                pend.append(('kv', j, b, reg))
            reg = PD + 4 * (nres % 8)
            nres += 1
            a(f'v_mfma_f32_16x16x32_bf16 {vr(reg, 4)}, {vr(PK+4*b, 4)}, {vr(ONES, 4)}, 0')
            pend.append(('z', 0, b, reg))
        flush_writes()
        a('s_waitcnt lgkmcnt(0)\ns_barrier')
        self.stamp(3)
        self.a_publish(204)
        a('v_mov_b32 v7, v204')
        self.stamp(4)
        PQ = lambda rb, p: 48 + 12 * rb + 4 * p
        for j in range(5):
            phi(j, lambda rb, h: PQ(rb, j // 2) + 2 * (j & 1) + h)
        for rb in range(2):
            a(f'v_mov_b32 v{PQ(rb, 2)+2}, 0\nv_mov_b32 v{PQ(rb, 2)+3}, 0')
        OP = 72
        for r in range(48):
            a(f'v_mov_b32 v{OP+r}, 0')
        a('v_and_b32 v250, 15, v0\nv_lshrrev_b32 v251, 4, v0\nv_lshlrev_b32 v251, 3, v251')
        a(f'v_mul_u32_u24 v252, 40, v250\nv_add_u32 v1, v251, v252\nv_and_b32 v250, 3, v250\nv_mul_u32_u24 v252, 800, v250\nv_add_u32 v2, v251, v252')
        a('v_lshrrev_b32 v252, 2, v0\nv_mul_u32_u24 v252, 160, v252\nv_and_b32 v253, 3, v0\nv_lshl_add_u32 v252, v253, 3, v252')
        a(f'v_add_u32 v3, {self.A_WO}, v252')
        self.xcc_check(250)
        self.a_gather(7, 128)
        self.stamp(5)
        a('s_barrier')
        ops = {}
        oplist = [(0, 0), (1, 0), (1, 1), (2, 0), (2, 1), (3, 1), (3, 2), (4, 1), (4, 2), ('z', 0), ('z', 1), ('z', 2)]
        oplist = oplist[9:] + oplist[:9]
        for n, (j, p) in enumerate(oplist):
            ops[(j, p)] = OP + 4 * n
            for t in range(2):
                b = 2 * p + t
                if j == 'z':
                    if b < 5:
                        self.execmask(sum(1 << (16*g+i) for g in range(4) for i in range(16) if (i & 3) == head(16*b+4*g)))
                        a(f'ds_read_b64 {vr(OP+4*n+2*t, 2)}, v2 offset:{self.A_KVB+800+32*b}')
                elif (j, b) in pieces:
                    self.execmask(kvmask(j, b))
                    a(f'ds_read_b64 {vr(OP+4*n+2*t, 2)}, v1 offset:{self.A_KVB+640*j+32*b}')
        a('s_mov_b64 exec, -1')
        DEN = lambda rb: 8 + 4 * rb
        NUM = lambda j, rb: 128 + 4 * (2 * j + rb)
        for rb in range(2):
            for r in range(4):
                a(f'v_mov_b32 v{DEN(rb)+r}, v{VC+2}')
        a(f's_mov_b64 s[{S_M}:{S_M+1}], 0xffff\ns_mov_b32 s{S_M+2}, -1\ns_mov_b32 s{S_M+3}, 0\ns_mov_b32 s{S_M+4}, -1\ns_mov_b32 s{S_M+5}, 0xffff')
        a(f's_lshl_b32 s{S_T2}, s{S_CH}, 2\ns_add_u32 s{S_T2}, s{S_T2}, s{S_W}\ns_mul_i32 s{S_T2}, s{S_T2}, 40960\ns_add_u32 s{S_T2}, s{S_T2}, {WS_O}')
        a(f's_mul_i32 s{S_T3}, s{S_G}, 5120\ns_add_u32 s{S_T3}, s{S_T3}, s{S_T2}\nv_lshlrev_b32 v7, 4, v0')
        a('s_waitcnt lgkmcnt(13)')
        for p in range(3):
            for rb in range(2):
                d = vr(DEN(rb), 4)
                a(f'v_mfma_f32_16x16x32_bf16 {d}, {vr(ops[("z", p)], 4)}, {vr(PQ(rb, p), 4)}, {d}')
        a('s_waitcnt lgkmcnt(0)')
        for j in range(5):
            ps = [p for (jj, p) in oplist if jj == j]
            for k, p in enumerate(ps):
                for rb in range(2):
                    d = vr(NUM(j, rb), 4)
                    a(f'v_mfma_f32_16x16x32_bf16 {d}, {vr(ops[(j, p)], 4)}, {vr(PQ(rb, p), 4)}, ' + ('0' if k == 0 else d))
        RC = lambda rb, j: 16 + 6 * rb + j
        for rb in range(2):
            for r in range(4):
                a(f'v_rcp_f32 v{DEN(rb)+r}, v{DEN(rb)+r}')
        for rb in range(2):
            a(f'v_mov_b32 v{RC(rb, 0)}, v{DEN(rb)}\nv_mov_b32 v{RC(rb, 4)}, v{DEN(rb)+3}')
            for j in range(1, 4):
                a(f'v_cndmask_b32 v{RC(rb, j)}, v{DEN(rb)+j}, v{DEN(rb)+j-1}, s[{S_M+2*(j-1)}:{S_M+2*(j-1)+1}]')
        OF = 28
        ofreg = lambda j, rb: OF + (4 * (2 * (j // 2) + rb) + 2 * (j & 1) if j < 4 else 16 + 2 * rb)
        for j in range(5):
            for rb in range(2):
                N = NUM(j, rb)
                rc = RC(rb, j)
                sel = 'op_sel:[0,1] op_sel_hi:[1,1]' if rc & 1 else 'op_sel:[0,0] op_sel_hi:[1,0]'
                for h in range(2):
                    a(f'v_pk_mul_f32 {vr(N+2*h, 2)}, {vr(N+2*h, 2)}, {vr(rc & ~1, 2)} {sel}')
            for rb in range(2):
                N = NUM(j, rb)
                for h in range(2):
                    a(f'v_cvt_pk_bf16_f32 v{ofreg(j, rb)+h}, v{N+2*h}, v{N+2*h+1}')
            if j in (1, 3):
                for rb in range(2):
                    f = 2 * (j // 2) + rb
                    a(f'buffer_store_dwordx4 {vr(OF+4*f, 4)}, v7, s[{SRDW}:{SRDW+3}], s{S_T3} offen offset:{1024*f}')
            if j == 4:
                a(f's_add_u32 s{S_T3}, s{S_T3}, 4096\nbuffer_store_dwordx4 {vr(OF+16, 4)}, v7, s[{SRDW}:{SRDW+3}], s{S_T3} offen')
        self.stamp(6)
        lab = self.hop2(250)
        acc2 = lambda j, rb: 48 + 4 * (2 * j + rb)
        a('s_mov_b64 exec, -1')
        for r in range(40):
            a(f'v_mov_b32 v{48+r}, 0')
        ORG = 88
        WR2 = 128
        q = Cnt(a, 'lgkmcnt', 15)
        vq = Cnt(a, 'vmcnt', 63)
        LEAD = 7
        KS = [((0, 1), (0, 1)), ((2, 3), (2, 3)), ((5, 6), (5, 6)), ((7, 8), (7, 8)), ((4, 9), (4, 9))]
        oreg = lambda f: ORG + 4 * ({4: 8, 9: 9}.get(f, f if f < 4 else f - 1))

        def rd_w(m, it):
            ks, j = divmod(m, 5)
            for t in range(2):
                a(f'ds_read_b64_tr_b16 {vr(WR2+4*m+2*t, 2)}, v3 offset:{2560*KS[ks][1][t]+32*j}')
                q.issue((it, m))

        def ld_o(f, it):
            s = S_T2 if f < 4 else (S_T3 if f < 8 else S_T1)
            a(f'buffer_load_dwordx4 {vr(oreg(f), 4)}, v7, s[{SRDW}:{SRDW+3}], s{s} offen offset:{1024*(f & 3)} sc1')
            vq.issue((it, f))
        for m in range(LEAD):
            rd_w(m, 0)
        self.hop2_wait(250, lab)
        self.stamp(7)
        self.epoch_update(0)
        a(f's_add_u32 s{S_T3}, s{S_T2}, 4096\ns_add_u32 s{S_T1}, s{S_T2}, 8192\ns_mov_b32 s{S_CNT}, 0\ns_mov_b32 s{S_M}, {OOB:#x}')
        for ks in range(5):
            for f in KS[ks][0]:
                ld_o(f, 0)
        texts = []
        for it in range(3):
            start = len(a.lines)
            a(f's_cmp_lt_u32 s{S_CNT}, 3\ns_cselect_b32 s{S_T0}, 10240, s{S_M}')
            a(f's_add_u32 s{S_T2}, s{S_T2}, s{S_T0}\ns_add_u32 s{S_T3}, s{S_T3}, s{S_T0}\ns_add_u32 s{S_T1}, s{S_T1}, s{S_T0}')
            for m in range(25):
                ks, j = divmod(m, 5)
                if j == 0:
                    vq.wait((it, KS[ks][0][1]))
                    if ks == 4:
                        r = oreg(4)
                        a(f'v_swap_b32 v{r+2}, v{r+4}\nv_swap_b32 v{r+3}, v{r+5}')
                if m + LEAD == 25:
                    a(f'v_add_u32 v3, 25600, v3')
                q.wait((it, m))
                for rb in range(2):
                    d = vr(acc2(j, rb), 4)
                    a(f'v_mfma_f32_16x16x32_bf16 {d}, {vr(oreg(KS[ks][0][rb]), 4)}, {vr(WR2+4*m, 4)}, {d}')
                if m + LEAD < 25:
                    rd_w(m + LEAD, it)
                else:
                    rd_w(m + LEAD - 25, it + 1)
                if j == 4:
                    for f in KS[ks][0]:
                        ld_o(f, it + 1)
            texts.append(a.lines[start:])
            del a.lines[start:]
        assert texts[1] == texts[2]
        if texts[0] != texts[1]:
            a('s_waitcnt lgkmcnt(0)')
        L = a.uniq('L_ap2')
        a('.p2align 3')
        a.label(L)
        a.lines += texts[1]
        a(f's_add_u32 s{S_CNT}, s{S_CNT}, 1\ns_cmp_lt_u32 s{S_CNT}, 4\ns_cbranch_scc1 {L}')
        self.stamp(8)
        self.out_stores(acc2, 0)
        self.finish()

    B_SLOT = 36864
    B_G = 147456
    B_PART1 = 157696
    B_PART2 = 160768
    B_XT = 122880

    def b_loader(self):
        a = self.a
        VX, VW, VP = 1, 5, 13
        a.label('L_BL')
        self.x_offsets(VX, True)
        self.start_chunk(S_KC)
        a(f's_mov_b32 s{S_M+6}, s{S_KC}')
        a(f's_and_b32 s{S_T1}, s{S_W}, 1\ns_mul_i32 s{S_T0}, s{S_T1}, 40\ns_mul_i32 s{S_T2}, s{S_G}, 80\ns_add_u32 s{S_T0}, s{S_T0}, s{S_T2}\ns_mul_i32 s{S_T0}, s{S_T0}, 1280')
        a(f's_lshl_b32 s{S_T1}, s{S_T1}, 6')
        a('v_lshrrev_b32 v250, 4, v0\nv_and_b32 v251, 7, v0\nv_xor_b32 v250, v250, v251\nv_lshlrev_b32 v250, 4, v250')
        a(f'v_xor_b32 v250, s{S_T1}, v250\nv_xor_b32 v252, 64, v250')
        a(f'v_lshrrev_b32 v251, 3, v0\nv_mul_u32_u24 v251, 1280, v251\nv_add_u32 v251, s{S_T0}, v251')
        a('v_add_u32 v250, v250, v251\nv_add_u32 v252, v252, v251')
        for n in range(5):
            a(f'v_add_u32 v{VW+n}, {8*n*1280}, v{252 if n & 1 else 250}')
        a(f's_lshl_b32 s{S_M+4}, s{S_W}, 12\ns_mul_i32 s{S_M+5}, s{S_W}, 5120\ns_mov_b32 s{S_SLOT}, 0')
        a('s_waitcnt lgkmcnt(0)')
        self.load_epoch()
        self.srd(SRD0, P_BX, 2048 * 1280)
        a(f's_cmp_ge_u32 s{S_W}, 2')
        a(f's_cselect_b32 s{SRD1}, s{P_BIM}, s{P_BRE}\ns_cselect_b32 s{SRD1+1}, s{P_BIM+1}, s{P_BRE+1}\ns_mov_b32 s{SRD1+2}, 819200\ns_mov_b32 s{SRD1+3}, 0x20000')
        a(f's_cselect_b32 s{SRD2}, s{P_CIM}, s{P_CRE}\ns_cselect_b32 s{SRD2+1}, s{P_CIM+1}, s{P_CRE+1}\ns_mov_b32 s{SRD2+2}, 819200\ns_mov_b32 s{SRD2+3}, 0x20000')
        self.srd(SRDW, P_WS, WS_SIZE)

        def issue():
            a(f's_lshl_b32 s{S_T0}, s{S_KC}, 7')
            a(f's_add_u32 s{S_T2}, s{S_SLOT}, s{S_M+4}\ns_add_u32 s{S_T3}, s{S_SLOT}, s{S_M+5}\ns_add_u32 s{S_T3}, s{S_T3}, 16384')
            for n in range(4):
                a(f's_add_u32 m0, s{S_T2}, {1024*n}\nbuffer_load_dwordx4 v{VX+n}, s[{SRD0}:{SRD0+3}], s{S_T0} offen lds')
            for n in range(5):
                a(f's_add_u32 m0, s{S_T3}, {1024*n}\nbuffer_load_dwordx4 v{VW+n}, s[{SRD1}:{SRD1+3}], s{S_T0} offen lds')
            self.next_kc()
            a(f's_add_u32 s{S_SLOT}, s{S_SLOT}, {self.B_SLOT}\ns_cmp_eq_u32 s{S_SLOT}, {4*self.B_SLOT}\ns_cselect_b32 s{S_SLOT}, 0, s{S_SLOT}')
        self.stamp(1)
        Lp, Lskip = a.uniq('L_bp'), a.uniq('L_bsteady')
        a(f's_mov_b32 s{S_CNT}, 0')
        a.label(Lp)
        issue()
        a(f's_add_u32 s{S_CNT}, s{S_CNT}, 1\ns_cmp_lt_u32 s{S_CNT}, 4\ns_cbranch_scc1 {Lp}')
        a(f's_cmp_gt_u32 s{S_CNT}, 4\ns_cbranch_scc1 {Lskip}')
        self.stamp(7)
        a('s_waitcnt vmcnt(27)')
        self.stamp(8)
        a('s_barrier\ns_waitcnt vmcnt(18)\ns_barrier')
        a.label(Lskip)
        a('s_waitcnt vmcnt(9)\ns_barrier')
        a(f's_cmp_lt_u32 s{S_CNT}, 10\ns_cbranch_scc1 {Lp}')
        a('s_waitcnt lgkmcnt(0)')
        self.make_tag()
        ny = 0
        if self.o['prewarm']:
            a(f's_lshl_b32 s{S_T0}, s{S_CH}, 2\ns_add_u32 s{S_T0}, s{S_T0}, s{S_W}\ns_mul_i32 s{S_T0}, s{S_T0}, 81920\ns_mul_i32 s{S_T1}, s{S_G}, 10240')
            a(f's_add_u32 s{S_T0}, s{S_T0}, s{S_T1}\ns_add_u32 s{S_T0}, s{S_T0}, {WS_H}\nv_lshlrev_b32 v250, 7, v0')
            a(f'buffer_load_dword v254, v250, s[{SRDW}:{SRDW+3}], s{S_T0} offen sc1\ns_add_u32 s{S_T0}, s{S_T0}, 8192\ns_mov_b64 exec, 0xffff')
            a(f'buffer_load_dword v255, v250, s[{SRDW}:{SRDW+3}], s{S_T0} offen sc1\ns_mov_b64 exec, -1')
            ny = 2
        self.period_offsets(VP)
        a(f's_waitcnt vmcnt({ny})\ns_barrier')
        self.publish_xcc()
        a(f's_lshl_b32 s{S_T0}, s{S_CH}, 2\ns_add_u32 s{S_T0}, s{S_T0}, s{S_W}\ns_mul_i32 s{S_T0}, s{S_T0}, {32*1280}')
        a(f's_add_u32 s{S_T1}, s{S_M+5}, {self.B_XT}')
        for n in range(5):
            a(f's_add_u32 m0, s{S_T1}, {1024*n}\nbuffer_load_dwordx4 v{VP+n}, s[{SRD0}:{SRD0+3}], s{S_T0} offen lds')
        a('s_barrier')
        self.stamp(2)
        a('s_barrier')
        self.stamp(3)
        Ln = a.uniq('L_bnp')
        a(f's_cmp_lg_u32 s{S_W}, 0\ns_cbranch_scc1 {Ln}')
        a('v_and_b32 v20, 15, v0\nv_mul_u32_u24 v20, 48, v20\nv_and_b32 v21, 0x30, v0\nv_add_u32 v20, v20, v21\nv_lshlrev_b32 v21, 4, v0')
        a(f'v_add_u32 v20, {self.B_G}, v20')
        self.execmask((1 << 48) - 1)
        for w in range(4):
            a(f'ds_read_b128 {vr(24+4*w, 4)}, v20 offset:{self.B_PART1-self.B_G+768*w}')
        a(f's_lshl_b32 s{S_T1}, s{S_G}, 4\ns_add_u32 s{S_T1}, s{S_T1}, s{S_CH}\ns_mul_i32 s{S_T1}, s{S_T1}, 768\ns_add_u32 s{S_T1}, s{S_T1}, {WS_AGG}')
        for m in range(4):
            a(f's_lshr_b32 s{S_T0}, s{S_TAG}, {8*m}\nv_mov_b32 v{40+m}, s{S_T0}')
        a(f's_movk_i32 s{S_T0}, 0xff\ns_waitcnt lgkmcnt(0)')
        for h in range(2):
            a(f'v_pk_add_f32 {vr(24+2*h, 2)}, {vr(24+2*h, 2)}, {vr(28+2*h, 2)}\nv_pk_add_f32 {vr(32+2*h, 2)}, {vr(32+2*h, 2)}, {vr(36+2*h, 2)}')
        for h in range(2):
            a(f'v_pk_add_f32 {vr(24+2*h, 2)}, {vr(24+2*h, 2)}, {vr(32+2*h, 2)}')
        for m in range(4):
            a(f'v_bfi_b32 v{24+m}, s{S_T0}, v{40+m}, v{24+m}')
        a(f'buffer_store_dwordx4 v[24:27], v21, s[{SRDW}:{SRDW+3}], s{S_T1} offen sc1\ns_mov_b64 exec, -1')
        a.label(Ln)
        self.stamp(4)
        a('s_waitcnt vmcnt(0)\ns_barrier')
        self.stamp(5)
        a(f's_mov_b32 s{S_KC}, s{S_M+6}\ns_mov_b32 s{S_SLOT}, s{S_M+5}\ns_mov_b32 s{S_CNT}, 0')
        Lc = a.uniq('L_bc')
        Lk1, Lk2 = a.uniq('L_bk'), a.uniq('L_bk')
        a.label(Lc)
        a(f's_lshl_b32 s{S_T0}, s{S_KC}, 7')
        for n in range(5):
            a(f's_add_u32 m0, s{S_SLOT}, {1024*n}\nbuffer_load_dwordx4 v{VW+n}, s[{SRD2}:{SRD2+3}], s{S_T0} offen lds')
        self.next_kc()
        a(f's_add_u32 s{S_SLOT}, s{S_SLOT}, 20480\ns_add_u32 s{S_CNT}, s{S_CNT}, 1')
        a(f's_cmp_lg_u32 s{S_CNT}, 6\ns_cbranch_scc1 {Lk1}\ns_barrier')
        a.label(Lk1)
        a(f's_cmp_lg_u32 s{S_CNT}, 8\ns_cbranch_scc1 {Lk2}')
        a('s_waitcnt vmcnt(0)')
        self.stamp(6)
        a('s_barrier')
        a(f's_barrier\ns_mov_b32 s{S_SLOT}, s{S_M+5}')
        a.label(Lk2)
        a(f's_cmp_lt_u32 s{S_CNT}, 10\ns_cbranch_scc1 {Lc}')
        a('s_waitcnt vmcnt(0)\ns_barrier')
        self.finish()

    def b_compute(self):
        a = self.a
        acc = lambda jj, rb: 8 + 4 * (2 * jj + rb)
        XF, WR = 88, 104
        vXA, vWA = 1, 3
        PA, PC, PAB, PWH, PA4, PA8, PWG, PD, SEL = 144, 154, 164, 184, 194, 204, 214, 234, 240
        a.label('L_BC')
        a('v_and_b32 v250, 15, v0\nv_lshrrev_b32 v251, 4, v0\nv_lshrrev_b32 v252, 1, v250\nv_xor_b32 v252, v252, v251')
        a(f's_lshl_b32 s{S_T0}, s{S_W}, 12\nv_lshlrev_b32 v252, 4, v252\nv_lshl_add_u32 v252, v250, 7, v252\nv_add_u32 v{vXA}, s{S_T0}, v252')
        a(f'v_xor_b32 v{vXA+1}, 64, v{vXA}\nv_add_u32 v{vWA}, 16384, v252\nv_xor_b32 v{vWA+1}, 64, v{vWA}')
        a(f's_mul_i32 s{S_T0}, s{S_G}, 160\nv_lshlrev_b32 v5, 1, v250\nv_add_u32 v5, s{S_T0}, v5')
        a('s_waitcnt lgkmcnt(0)')
        self.load_epoch()
        RAW = 88
        for k, p in enumerate((P_LDT, P_LRE, P_LIM, P_DSK)):
            self.srd(SRD0, p, 1280)
            for j in range(5):
                a(f'buffer_load_ushort v{RAW+5*k+j}, v5, s[{SRD0}:{SRD0+3}], 0 offen offset:{32*j}')
        self.srd(SRDW, P_WS, WS_SIZE)
        a(f's_cmp_lg_u32 s{S_W}, 0\ns_cbranch_scc1 L_bc_nopf')
        self.code_prefetch('L_BL', 'L_END')
        a.label('L_bc_nopf')
        for r in range(80):
            a(f'v_mov_b32 v{8+r}, 0')
        a('v_lshlrev_b32 v251, 3, v251\nv_sub_u32 v252, v250, v251\nv_mov_b32 v253, 0x3f80\nv_mov_b32 v254, 0x3f800000')
        for H in range(2):
            for m in range(4):
                a(f'v_cmp_eq_u32 vcc, {m-16*H}, v252\nv_cndmask_b32 v{SEL+4*H+m}, 0, v253, vcc')
                a(f'v_cmp_eq_u32 vcc, {m+4-16*H}, v252\nv_cndmask_b32 v{SEL+4*H+m}, v{SEL+4*H+m}, v254, vcc')
        NS = 108
        a(f's_lshl_b32 s{S_T0}, s{S_W}, 2\nv_lshrrev_b32 v251, 4, v0\nv_add_u32 v251, s{S_T0}, v251\nv_cvt_f32_u32 v252, v251')
        a(f'v_mul_f32 v{NS+1}, 0x41000000, v252\nv_sub_f32 v{NS}, 0x42f00000, v{NS+1}\nv_add_f32 v{NS+2}, 4.0, v{NS+1}')
        a(f's_sub_u32 s{S_T0}, s{S_CH}, 1\nv_sub_u32 v253, s{S_T0}, v251\nv_max_i32 v253, 0, v253\nv_cvt_f32_i32 v253, v253\nv_mul_f32 v{NS+3}, 0x43000000, v253')
        a(f'v_cmp_gt_u32 s[{S_M+6}:{S_M+7}], s{S_CH}, v251')
        a('s_waitcnt vmcnt(0)')
        ZR, ZI, T = 112, 113, 114

        def cpow(n, dre, dim):
            if n == '1.0':
                a(f'v_exp_f32 v{T}, v{ZR}\nv_fract_f32 v{T+1}, v{ZI}')
            else:
                a(f'v_mul_f32 v{T}, {n}, v{ZR}\nv_mul_f32 v{T+1}, {n}, v{ZI}\nv_exp_f32 v{T}, v{T}\nv_fract_f32 v{T+1}, v{T+1}')
            a(f'v_cos_f32 v{T+2}, v{T+1}\nv_sin_f32 v{T+1}, v{T+1}\nv_mul_f32 v{dre}, v{T}, v{T+2}\nv_mul_f32 v{dim}, v{T}, v{T+1}')

        def cmul(dre, dim, are, aim, bre, bim):
            a(f'v_mul_f32 v{T}, v{aim}, v{bim}\nv_mul_f32 v{T+1}, v{aim}, v{bre}')
            a(f'v_fma_f32 v{T}, v{are}, v{bre}, -v{T}\nv_fma_f32 v{dim}, v{are}, v{bim}, v{T+1}\nv_mov_b32 v{dre}, v{T}')
        for j in range(5):
            ldt, lre, lim = RAW + j, RAW + 5 + j, RAW + 10 + j
            a(f'v_lshlrev_b32 v{ldt}, 16, v{ldt}\nv_lshlrev_b32 v{lre}, 16, v{lre}\nv_lshlrev_b32 v{lim}, 16, v{lim}\nv_lshlrev_b32 v{PD+j}, 16, v{RAW+15+j}')
            a(f'v_mul_f32 v{ldt}, {f2u(LOG2E):#x}, v{ldt}\nv_exp_f32 v{ldt}, v{ldt}\nv_cvt_pk_bf16_f32 v{ldt}, v{ldt}, v{ldt}\nv_lshlrev_b32 v{ldt}, 16, v{ldt}')
            a(f'v_mul_f32 v{ZR}, v{ldt}, v{lre}\nv_mul_f32 v{ZI}, v{ldt}, v{lim}')
            a(f'v_mul_f32 v{ZR}, {f2u(LOG2E):#x}, v{ZR}\nv_mul_f32 v{ZI}, 0.15915494, v{ZI}')
            cpow('1.0', PA + 2 * j, PA + 2 * j + 1)
            cpow('4.0', PA4 + 2 * j, PA4 + 2 * j + 1)
            cpow('0x41000000', PA8 + 2 * j, PA8 + 2 * j + 1)
            cpow(f'v{NS}', PWG + 2 * j, PWG + 2 * j + 1)
            cpow(f'v{NS+3}', PWH + 2 * j, PWH + 2 * j + 1)
            a(f'v_mul_f32 v118, v{lre}, v{lre}\nv_fmac_f32 v118, v{lim}, v{lim}\nv_rcp_f32 v118, v118\nv_add_f32 v119, -1.0, v{PA+2*j}')
            a(f'v_mul_f32 v120, v119, v{lre}\nv_fmac_f32 v120, v{PA+2*j+1}, v{lim}\nv_mul_f32 v121, v{PA+2*j+1}, v{lre}\nv_fma_f32 v121, -v119, v{lim}, v121')
            a(f'v_add_f32 v118, v118, v118\nv_mul_f32 v{PC+2*j}, v120, v118\nv_mul_f32 v{PC+2*j+1}, v121, v118')
            for k in range(2):
                cpow(f'v{NS+1+k}', 118, 119)
                cmul(PAB + 4 * j + k, PAB + 4 * j + 2 + k, 118, 119, PC + 2 * j, PC + 2 * j + 1)
        a('s_waitcnt lgkmcnt(0)')
        self.make_tag()
        self.dump('b_par', range(144, 248))

        def wread(n, reg):
            ks, jj = divmod(n, 10)
            a(f'ds_read_b128 {vr(reg, 4)}, v{vWA+ks} offset:{2048*jj}')
            return 1
        self.mainloop(10, acc, XF, WR, vXA, [vWA, vWA + 1], wread, lambda j: False, self.B_SLOT, 4, False)
        self.stamp(2)
        self.dump('b_acc', range(8, 88))
        U = lambda j, c, s: acc(j + 5 * c, s >> 1) + 2 * (s & 1)
        S = lambda j, c: 88 + 4 * j + 2 * c
        TT = lambda j, c: 108 + 4 * j + 2 * c
        sRE, sIM = 'op_sel:[0,0,0] op_sel_hi:[0,1,1]', 'op_sel:[1,0,0] op_sel_hi:[1,1,1]'

        def step(j, hre, him, ure, uim, tre, tim, dre, dim):
            return [f'v_pk_fma_f32 {vr(tre, 2)}, {vr(PA+2*j, 2)}, {vr(him, 2)}, {vr(ure, 2)} {sIM} neg_lo:[1,0,0] neg_hi:[1,0,0]',
                    f'v_pk_fma_f32 {vr(tim, 2)}, {vr(PA+2*j, 2)}, {vr(hre, 2)}, {vr(uim, 2)} {sIM}',
                    f'v_pk_fma_f32 {vr(dre, 2)}, {vr(PA+2*j, 2)}, {vr(hre, 2)}, {vr(tre, 2)} {sRE}',
                    f'v_pk_fma_f32 {vr(dim, 2)}, {vr(PA+2*j, 2)}, {vr(him, 2)}, {vr(tim, 2)} {sRE}']

        def interleave(lists):
            for k in range(max(len(x) for x in lists)):
                for x in lists:
                    if k < len(x):
                        a(x[k])

        def cmac(d, c, p, x):
            if c is None:
                first = f'v_pk_mul_f32 {vr(d, 2)}, {vr(p, 2)}, {vr(x, 2)} op_sel:[0,0] op_sel_hi:[0,1]'
            else:
                first = f'v_pk_fma_f32 {vr(d, 2)}, {vr(p, 2)}, {vr(x, 2)}, {vr(c, 2)} op_sel:[0,0,0] op_sel_hi:[0,1,1]'
            return [first, f'v_pk_fma_f32 {vr(d, 2)}, {vr(p, 2)}, {vr(x, 2)}, {vr(d, 2)} op_sel:[1,1,0] op_sel_hi:[1,0,1] neg_lo:[1,0,0]']
        a(f'v_and_b32 v250, 15, v0\nv_lshrrev_b32 v251, 4, v0\ns_mul_i32 s{S_T0}, s{S_W}, 768\nv_mul_u32_u24 v252, 48, v250\nv_add_u32 v252, {self.B_G}, v252')
        a(f'v_and_b32 v253, 1, v251\nv_lshlrev_b32 v253, 3, v253\nv_lshrrev_b32 v254, 1, v251\nv_lshl_add_u32 v253, v254, 2, v253')
        a(f'v_add3_u32 v1, v252, v253, s{S_T0}\nv_mov_b32 v5, v252')
        a(f's_mul_i32 s{S_T0}, s{S_W}, 2560\nv_mul_u32_u24 v252, 640, v251\nv_lshlrev_b32 v3, 3, v250\nv_add_u32 v3, {self.B_G}, v3\nv_add3_u32 v2, v252, v3, s{S_T0}')
        for s in range(1, 4):
            interleave([step(j, U(j, 0, 0) if s == 1 else S(j, 0), U(j, 1, 0) if s == 1 else S(j, 1), U(j, 0, s), U(j, 1, s),
                             TT(j, 0), TT(j, 1), S(j, 0), S(j, 1)) for j in range(5)])
        G = lambda j: 108 + 2 * j
        WT = 128
        interleave([[f'v_fma_f32 v{G(j)}, v{PA4+2*j}, v{S(j, 0)}, v{S(j, 0)+1}',
                     f'v_fma_f32 v{G(j)+1}, v{PA4+2*j}, v{S(j, 1)}, v{S(j, 1)+1}',
                     f'v_fma_f32 v{G(j)}, -v{PA4+2*j+1}, v{S(j, 1)}, v{G(j)}',
                     f'v_fma_f32 v{G(j)+1}, v{PA4+2*j+1}, v{S(j, 0)}, v{G(j)+1}'] for j in range(5)])
        a(f'v_mov_b32 v{WT+10}, 0\nv_mov_b32 v{WT+11}, 0')
        interleave([cmac(WT + 2 * j, None, PWG + 2 * j, G(j)) for j in range(5)])

        def reduce_write(part):
            for Q in range(3):
                r = WT + 4 * Q
                a(f'v_permlane32_swap_b32 v{r}, v{r+1}\nv_permlane32_swap_b32 v{r+2}, v{r+3}')
            for Q in range(3):
                r = WT + 4 * Q
                a(f'v_add_f32 v{r}, v{r}, v{r+1}\nv_add_f32 v{r+2}, v{r+2}, v{r+3}')
            for Q in range(3):
                r = WT + 4 * Q
                a(f'v_permlane16_swap_b32 v{r}, v{r+2}')
            for Q in range(3):
                r = WT + 4 * Q
                a(f'v_add_f32 v{r}, v{r}, v{r+2}')
            for Q in range(3):
                a(f'ds_write_b32 v1, v{WT+4*Q} offset:{part-self.B_G+16*Q}')
        reduce_write(self.B_PART1)
        for j in range(5):
            a(f'ds_write_b64 v2, {vr(G(j), 2)} offset:{128*j}')
        a('s_waitcnt lgkmcnt(0)\ns_barrier')
        self.stamp(3)
        XR = 214
        a('v_lshrrev_b32 v252, 2, v0\nv_mul_u32_u24 v252, 160, v252\nv_and_b32 v253, 3, v0\nv_lshl_add_u32 v252, v253, 3, v252')
        a(f's_mul_i32 s{S_T0}, s{S_W}, 5120\ns_add_u32 s{S_T0}, s{S_T0}, {self.B_XT}\nv_add_u32 v4, s{S_T0}, v252')
        P = lambda j: 108 + 2 * j
        GB = lambda k, j: 118 + 10 * k + 2 * j
        for j in range(5):
            a(f'ds_read_b64 {vr(GB(0, j), 2)}, v3 offset:{128*j}')
        for j in range(5):
            a(f'v_mov_b32 v{P(j)}, 0\nv_mov_b32 v{P(j)+1}, 0')
        a(f's_lshl_b32 s{S_CNT}, s{S_W}, 2\ns_sub_u32 s{S_CNT}, 0, s{S_CNT}')
        Lh = a.uniq('L_horner')
        a.label(Lh)
        for k in range(2):
            for j in range(5):
                a(f'ds_read_b64 {vr(GB(1-k, j), 2)}, v3 offset:{640*(k+1)+128*j}')
            a(f's_add_u32 s{S_CNT}, s{S_CNT}, 1\ns_max_i32 s{S_T0}, s{S_CNT}, 0\ns_lshl_b32 s{S_T0}, s{S_T0}, 4')
            a(f's_lshl_b64 s[{S_M}:{S_M+1}], -1, s{S_T0}\ns_cmp_lt_i32 s{S_CNT}, 4\ns_cselect_b64 exec, s[{S_M}:{S_M+1}], 0')
            a('s_waitcnt lgkmcnt(5)')
            interleave([cmac(GB(k, j), GB(k, j), PA8 + 2 * j, P(j)) + [f'v_mov_b64 {vr(P(j), 2)}, {vr(GB(k, j), 2)}'] for j in range(5)])
            a('s_mov_b64 exec, -1')
        a(f'v_add_u32 v3, 1280, v3\ns_cmp_lt_i32 s{S_CNT}, 4\ns_cbranch_scc1 {Lh}')
        a('s_waitcnt lgkmcnt(0)')
        PB = lambda j: 118 + 2 * j
        interleave([[f'v_fma_f32 v{PB(j)}, v{PA4+2*j}, v{P(j)}, v{S(j, 0)}',
                     f'v_fma_f32 v{PB(j)+1}, v{PA4+2*j}, v{P(j)+1}, v{S(j, 1)}',
                     f'v_fma_f32 v{PB(j)}, -v{PA4+2*j+1}, v{P(j)+1}, v{PB(j)}',
                     f'v_fma_f32 v{PB(j)+1}, v{PA4+2*j+1}, v{P(j)}, v{PB(j)+1}'] for j in range(5)])
        for k, src in enumerate((P, PB)):
            interleave([[f'v_mul_f32 v{S(j, 0)+k}, v{PC+2*j}, v{src(j)}',
                         f'v_mul_f32 v{S(j, 1)+k}, v{PC+2*j}, v{src(j)+1}',
                         f'v_fma_f32 v{S(j, 0)+k}, -v{PC+2*j+1}, v{src(j)+1}, v{S(j, 0)+k}',
                         f'v_fma_f32 v{S(j, 1)+k}, v{PC+2*j+1}, v{src(j)}, v{S(j, 1)+k}'] for j in range(5)])
        for s in range(4):
            interleave([[f'v_pk_mul_f32 {vr(TT(j, 0), 2)}, {vr(PC+2*j, 2)}, {vr(U(j, 1, s), 2)} op_sel:[1,0] op_sel_hi:[1,1]',
                         f'v_pk_mul_f32 {vr(TT(j, 1), 2)}, {vr(PC+2*j, 2)}, {vr(U(j, 0, s), 2)} op_sel:[1,0] op_sel_hi:[1,1]',
                         f'v_pk_fma_f32 {vr(U(j, 0, s), 2)}, {vr(PC+2*j, 2)}, {vr(U(j, 0, s), 2)}, {vr(TT(j, 0), 2)} {sRE} neg_lo:[0,0,1] neg_hi:[0,0,1]',
                         f'v_pk_fma_f32 {vr(U(j, 1, s), 2)}, {vr(PC+2*j, 2)}, {vr(U(j, 1, s), 2)}, {vr(TT(j, 1), 2)} {sRE}'] for j in range(5)])
        self.stamp(4)
        self.xcc_check(250)
        GD = 108
        top, ok, none = a.uniq('L_bgp'), a.uniq('L_bgok'), a.uniq('L_bgn')
        for r in range(12):
            a(f'v_mov_b32 v{GD+r}, 0')
        a(f's_lshl_b32 s{S_T0}, s{S_G}, 4\ns_lshl_b32 s{S_T1}, s{S_W}, 2\ns_add_u32 s{S_T0}, s{S_T0}, s{S_T1}\ns_mul_i32 s{S_T0}, s{S_T0}, 768\ns_add_u32 s{S_T0}, s{S_T0}, {WS_AGG}')
        a('v_lshrrev_b32 v251, 4, v0\nv_mul_u32_u24 v251, 768, v251\nv_and_b32 v250, 15, v0\nv_lshl_add_u32 v250, v250, 4, v251')
        for m in range(1, 4):
            a(f's_lshr_b32 s{S_M+m}, s{S_TAG}, {8*m}')
        a(f's_mov_b32 s{S_SPIN}, 0\ns_mov_b64 exec, s[{S_M+6}:{S_M+7}]\ns_cbranch_execz {none}')
        a.label(top)
        for Q in range(3):
            a(f'buffer_load_dwordx4 {vr(GD+4*Q, 4)}, v250, s[{SRDW}:{SRDW+3}], s{S_T0} offen offset:{256*Q} sc1')
        for Q in range(3):
            a(f's_waitcnt vmcnt({2-Q})')
            for m in range(4):
                tg = f's{S_TAG}' if m == 0 else f's{S_M+m}'
                if Q == 0 and m == 0:
                    a(f'v_xor_b32 v251, {tg}, v{GD}')
                else:
                    a(f'v_bitop3_b32 v251, v251, {tg}, v{GD+4*Q+m} bitop3:0xf6')
        a(f'v_and_b32 v251, 0xff, v251\nv_cmp_ne_u32 vcc, 0, v251\ns_cbranch_vccz {ok}')
        self.spin_check(top, ok)
        a.label(ok)
        a.label(none)
        a('s_mov_b64 exec, -1')
        self.stamp(5)
        a(f'v_mov_b32 v{WT+10}, 0\nv_mov_b32 v{WT+11}, 0')
        interleave([cmac(WT + 2 * j, None, PWH + 2 * j, GD + 2 * j) for j in range(5)])
        reduce_write(self.B_PART2)
        a('s_waitcnt lgkmcnt(0)\ns_barrier')
        HB = lambda w, Q: (108 if w < 3 else 184 - 36) + 12 * w + 4 * Q
        for w in range(4):
            for Q in range(3):
                a(f'ds_read_b128 {vr(HB(w, Q), 4)}, v5 offset:{self.B_PART2-self.B_G+768*w+16*Q}')
        for j in range(5):
            for rb in range(2):
                a(f'ds_read_b64_tr_b16 {vr(XR+4*j+2*rb, 2)}, v4 offset:{2560*rb+32*j}')
        a(f's_lshl_b32 s{S_T2}, s{S_CH}, 2\ns_add_u32 s{S_T2}, s{S_T2}, s{S_W}\ns_mul_i32 s{S_T2}, s{S_T2}, 81920\ns_add_u32 s{S_T2}, s{S_T2}, {WS_H}')
        a(f's_mul_i32 s{S_T3}, s{S_G}, 10240\ns_add_u32 s{S_T3}, s{S_T3}, s{S_T2}\nv_lshlrev_b32 v7, 4, v0')
        a('s_waitcnt lgkmcnt(10)')
        for j in range(5):
            a(f'v_pk_add_f32 {vr(HB(0, 0)+2*j, 2)}, {vr(HB(0, 0)+2*j, 2)}, {vr(HB(1, 0)+2*j, 2)}')
        for j in range(5):
            a(f'v_pk_add_f32 {vr(HB(2, 0)+2*j, 2)}, {vr(HB(2, 0)+2*j, 2)}, {vr(HB(3, 0)+2*j, 2)}')
        Hn = lambda j: HB(0, 0) + 2 * j
        for j in range(5):
            a(f'v_pk_add_f32 {vr(Hn(j), 2)}, {vr(Hn(j), 2)}, {vr(HB(2, 0)+2*j, 2)}')
        a('s_waitcnt lgkmcnt(0)\ns_barrier')
        bRE, bIM = 'op_sel:[0,0,0] op_sel_hi:[1,0,1]', 'op_sel:[0,1,0] op_sel_hi:[1,1,1]'
        interleave([[f'v_pk_fma_f32 {vr(S(j, 0), 2)}, {vr(PAB+4*j, 2)}, {vr(Hn(j), 2)}, {vr(S(j, 0), 2)} {bRE}',
                     f'v_pk_fma_f32 {vr(S(j, 1), 2)}, {vr(PAB+4*j, 2)}, {vr(Hn(j), 2)}, {vr(S(j, 1), 2)} {bIM}',
                     f'v_pk_fma_f32 {vr(S(j, 0), 2)}, {vr(PAB+4*j+2, 2)}, {vr(Hn(j), 2)}, {vr(S(j, 0), 2)} {bIM} neg_lo:[1,0,0] neg_hi:[1,0,0]',
                     f'v_pk_fma_f32 {vr(S(j, 1), 2)}, {vr(PAB+4*j+2, 2)}, {vr(Hn(j), 2)}, {vr(S(j, 1), 2)} {bRE}'] for j in range(5)])
        PKD = lambda j, c: 108 + 8 * (j & 1) + 4 * c
        TD = lambda j, c, H: 154 + 16 * (j & 1) + 8 * H + 4 * c
        FR = lambda j, H: 124 + 8 * (j & 1) + 4 * H

        def scan(js):
            for s in range(4):
                interleave([step(j, S(j, 0) if s == 0 else U(j, 0, s-1), S(j, 1) if s == 0 else U(j, 1, s-1),
                                 U(j, 0, s), U(j, 1, s), U(j, 0, s), U(j, 1, s), U(j, 0, s), U(j, 1, s)) for j in js])

        def pack(j):
            for c in range(2):
                n = '-' if c else ''
                for s in range(4):
                    a(f'v_cvt_pk_bf16_f32 v{PKD(j, c)+s}, {n}v{U(j, c, s)}, {n}v{U(j, c, s)+1}')
            for H in range(2):
                for c in range(2):
                    a(f'v_mfma_f32_16x16x32_bf16 {vr(TD(j, c, H), 4)}, {vr(PKD(j, c), 4)}, {vr(SEL+4*H, 4)}, 0')

        def emit(j):
            for H in range(2):
                for c in range(2):
                    for h in range(2):
                        a(f'v_cvt_pk_bf16_f32 v{FR(j, H)+2*c+h}, v{TD(j, c, H)+2*h}, v{TD(j, c, H)+2*h+1}')
                a(f'buffer_store_dwordx4 {vr(FR(j, H), 4)}, v7, s[{SRDW}:{SRDW+3}], s{S_T3} offen offset:{1024*(2*(j & 1)+H)}')
            if j & 1:
                a(f's_add_u32 s{S_T3}, s{S_T3}, 4096')
        scan([0, 1])
        pack(0)
        pack(1)
        scan([2, 3, 4])
        emit(0)
        pack(2)
        emit(1)
        pack(3)
        emit(2)
        pack(4)
        emit(3)
        emit(4)
        self.stamp(6)
        self.dump('b_h', range(8, 88))
        lab = self.hop2(250)
        a('s_mov_b64 exec, -1')
        acc2 = lambda j, rb: 144 + 4 * (2 * j + rb)
        a(f's_mov_b32 s{S_T0}, 0xffff0000')
        for j in range(5):
            for rb in range(2):
                A = acc2(j, rb)
                for h in range(2):
                    x = XR + 4 * j + 2 * rb + h
                    a(f'v_lshlrev_b32 v{A+2*h}, 16, v{x}\nv_and_b32 v{A+2*h+1}, s{S_T0}, v{x}')
                d = PD + j
                sel = 'op_sel:[0,1] op_sel_hi:[1,1]' if d & 1 else 'op_sel:[0,0] op_sel_hi:[1,0]'
                for h in range(2):
                    a(f'v_pk_mul_f32 {vr(A+2*h, 2)}, {vr(A+2*h, 2)}, {vr(d & ~1, 2)} {sel}')
        a('v_and_b32 v253, 15, v0\nv_lshrrev_b32 v254, 5, v0\nv_lshrrev_b32 v1, 1, v253\nv_xor_b32 v1, v1, v254\nv_lshlrev_b32 v1, 4, v1')
        a('v_lshl_add_u32 v1, v253, 7, v1\nv_bfe_u32 v254, v0, 4, 1\nv_lshl_add_u32 v1, v254, 3, v1')
        for ks in range(1, 4):
            a(f'v_xor_b32 v{1+ks}, {32*ks}, v1')
        self.start_chunk(S_KC)
        a('s_barrier')
        HR, CR = 8, 40
        q = Cnt(a, 'lgkmcnt', 15)
        vq = Cnt(a, 'vmcnt', 63)
        LEAD = 6

        def rd_c(m, it):
            ks, j = divmod(m, 5)
            for c in range(2):
                a(f'ds_read_b64 {vr(CR+4*(m % 10)+2*c, 2)}, v{1+ks} offset:{10240*c+2048*j}')
                q.issue((it, m))

        def ld_h(ks, it):
            for rb in range(2):
                a(f'buffer_load_dwordx4 {vr(HR+8*ks+4*rb, 4)}, v7, s[{SRDW}:{SRDW+3}], s{S_T3 if ks < 2 else S_T1} offen offset:{2048*(ks & 1)+1024*rb} sc1')
                vq.issue((it, ks))

        def h_off(check):
            a(f's_lshl_b32 s{S_T3}, s{S_KC}, 13\ns_add_u32 s{S_T3}, s{S_T3}, s{S_T2}')
            if check:
                a(f's_cmp_lt_u32 s{S_CNT}, 9\ns_cselect_b32 s{S_T3}, s{S_T3}, {OOB:#x}')
            a(f's_add_u32 s{S_T1}, s{S_T3}, 4096')
            self.next_kc()
        for m in range(LEAD):
            rd_c(m, 0)
        self.hop2_wait(250, lab)
        self.stamp(7)
        self.epoch_update(15)
        a(f's_mov_b32 s{S_CNT}, 0\ns_movk_i32 s{S_M}, 20480')
        h_off(False)
        for ks in range(4):
            ld_h(ks, 0)
        texts = []
        for it in range(3):
            start = len(a.lines)
            a(f's_cmp_eq_u32 s{S_CNT}, 2\ns_cselect_b32 s{S_T0}, 1, 0\ns_cmp_eq_u32 s{S_CNT}, 7\ns_cselect_b32 s{S_T0}, 1, s{S_T0}')
            a(f's_cmp_eq_u32 s{S_T0}, 0\ns_cbranch_scc1 L_bp2_nb\ns_barrier')
            a.label('L_bp2_nb')
            h_off(True)
            a(f's_cmp_eq_u32 s{S_CNT}, 7\ns_cselect_b32 s{S_T0}, {-7*20480 & 0xffffffff:#x}, s{S_M}')
            for m in range(20):
                ks, j = divmod(m, 5)
                if j == 0:
                    vq.wait((it, ks))
                q.wait((it, m))
                for rb in range(2):
                    d = vr(acc2(j, rb), 4)
                    a(f'v_mfma_f32_16x16x32_bf16 {d}, {vr(HR+8*ks+4*rb, 4)}, {vr(CR+4*(m % 10), 4)}, {d}')
                mm = m + LEAD
                if m == 0:
                    a(f'v_add_u32 v1, s{S_T0}, v1')
                if mm in (10, 15, 20):
                    a(f'v_add_u32 v{mm//5}, s{S_T0}, v{mm//5}')
                if mm < 20:
                    rd_c(mm, it)
                else:
                    rd_c(mm - 20, it + 1)
                if j == 4:
                    ld_h(ks, it + 1)
            texts.append(a.lines[start:])
            del a.lines[start:]
        assert texts[1] == texts[2]
        if texts[0] != texts[1]:
            a('s_waitcnt lgkmcnt(0)')
        L = a.uniq('L_bp2')
        a('.p2align 3')
        a.label(L)
        a.lines += texts[1]
        a(f's_add_u32 s{S_CNT}, s{S_CNT}, 1\ns_cmp_lt_u32 s{S_CNT}, 10\ns_cbranch_scc1 {L}')
        self.stamp(8)
        self.out_stores(acc2, 2560)
        self.finish()

    def build(self):
        a = self.a
        self.prologue()
        self.a_loader()
        self.a_compute()
        self.b_loader()
        self.b_compute()
        a.label('L_END')
        lines, n = hazard_pass(a.lines)
        k = NAME + '_kernel'
        head = f'''; fused linear attention block + S5 scan, one persistent launch (256 workgroups, one per CU)
; @launch grid=(256,1,1) block=(512,1,1) lds=163840
.amdgcn_target "amdgcn-amd-amdhsa--gfx950"
.text
.globl {k}
.p2align 8
.type {k},@function
{k}:
'''
        tail = f'''    s_endpgm
.section .rodata,"a"
.p2align 6
.amdhsa_kernel {k}
  .amdhsa_next_free_vgpr 256
  .amdhsa_next_free_sgpr 102
  .amdhsa_accum_offset 256
  .amdhsa_group_segment_fixed_size 0
  .amdhsa_kernarg_size 120
  .amdhsa_user_sgpr_count 2
  .amdhsa_user_sgpr_kernarg_segment_ptr 1
  .amdhsa_system_sgpr_workgroup_id_x 1
.end_amdhsa_kernel
'''
        return head + '\n'.join(lines) + '\n' + tail, n


if __name__ == '__main__':
    opts = {}
    out = f'cdna_kernels/{NAME}.s'
    for arg in sys.argv[1:]:
        k, v = arg.split('=', 1)
        if k == 'out':
            out = v
        else:
            opts[k] = {'1': True, '0': False}.get(v, v)
    text, n = Gen(**opts).build()
    open(out, 'w').write(text)
    print(f'wrote {out}: {len(text.splitlines())} lines, {n} nops inserted')
```

```python
import re

TRANS = ('v_exp_f32', 'v_log_f32', 'v_rcp_f32', 'v_rsq_f32', 'v_sqrt_f32', 'v_sin_f32', 'v_cos_f32', 'v_rcp_iflag_f32')
_REG = re.compile(r'(?<![\w.])(-|abs\()?([vsa])(?:(\d+)|\[(\d+):(\d+)\])')


def regs_of(op):
    out = set()
    op = op.strip()
    if op in ('vcc', 'vcc_lo', 'vcc_hi'):
        return {('s', 'vcc')}
    if op in ('exec', 'exec_lo', 'exec_hi'):
        return {('s', 'exec')}
    if op == 'm0':
        return {('s', 'm0')}
    m = _REG.match(op)
    if m:
        k = m.group(2)
        if m.group(3) is not None:
            out.add((k, int(m.group(3))))
        else:
            for r in range(int(m.group(4)), int(m.group(5)) + 1):
                out.add((k, r))
    return out


class Ins:
    def __init__(self, text):
        self.text = text
        t = text.split(';')[0].strip()
        self.label = None
        self.mn = None
        self.kind = 'other'
        self.w = set()
        self.r = set()
        self.srcC = set()
        self.srcAB = set()
        self.target = None
        self.states = 1
        self.dpp = False
        self.storedata = set()
        if not t:
            self.kind = 'comment'
            self.states = 0
            return
        if t.endswith(':'):
            self.label = t[:-1]
            self.kind = 'label'
            self.states = 0
            return
        if t.startswith('.'):
            self.kind = 'directive'
            self.states = 0
            return
        parts = t.split(None, 1)
        mn = parts[0]
        self.mn = mn
        rest = parts[1] if len(parts) > 1 else ''
        ops = [o.strip() for o in rest.split(',')] if rest else []
        mods = ''
        clean = []
        depth_open = False
        for o in ops:
            clean.append(o)
        ops = []
        cur = ''
        d = 0
        for ch in rest:
            if ch in '[(':
                d += 1
            if ch in '])':
                d -= 1
            if ch == ',' and d == 0:
                ops.append(cur.strip())
                cur = ''
            else:
                cur += ch
        if cur.strip():
            ops.append(cur.strip())
        if ops:
            last = ops[-1].split(None, 1)
            ops[-1] = last[0]
            mods = last[1] if len(last) > 1 else ''
        self.ops = ops
        self.mods = mods
        R = [regs_of(o) for o in ops]
        base = re.sub(r'_e(32|64)$|_dpp$|_sdwa$', '', mn)
        self.base = base
        if 'quad_perm' in mods or 'row_' in mods or 'wave_' in mods or mn.endswith('_dpp'):
            self.dpp = True
        if mn.startswith('v_mfma'):
            self.kind = 'mfma'
            self.w = set(R[0])
            self.srcAB = R[1] | R[2]
            self.srcC = set(R[3])
            self.r = self.srcAB | self.srcC
            if '16x16x32' in mn:
                self.passes = 4
            elif '32x32x16' in mn:
                self.passes = 8
            else:
                raise ValueError('unknown mfma ' + mn)
        elif mn.startswith('v_'):
            self.kind = 'valu'
            self.r |= {('s', 'exec')}
            if base.startswith('v_cmp'):
                self.w = set(R[0])
                for x in R[1:]:
                    self.r |= x
            elif base in ('v_swap_b32', 'v_permlane16_swap_b32', 'v_permlane32_swap_b32'):
                self.w = R[0] | R[1]
                self.r |= R[0] | R[1]
            elif base in ('v_add_co_u32', 'v_sub_co_u32', 'v_div_scale_f32', 'v_addc_co_u32'):
                self.w = R[0] | R[1]
                for x in R[2:]:
                    self.r |= x
            else:
                self.w = set(R[0])
                for x in R[1:]:
                    self.r |= x
                if base in ('v_fmac_f32', 'v_pk_fmac_f16', 'v_writelane_b32') or self.dpp:
                    self.r |= R[0]
                if base == 'v_div_fmas_f32':
                    self.r |= {('s', 'vcc')}
        elif mn.startswith('ds_'):
            self.kind = 'ds'
            if mn.startswith('ds_read') or mn.startswith('ds_bpermute') or mn.startswith('ds_swizzle'):
                self.w = set(R[0])
                for x in R[1:]:
                    self.r |= x
            else:
                for x in R:
                    self.r |= x
        elif mn.startswith('buffer_') or mn.startswith('global_'):
            self.kind = 'vmem'
            islds = re.search(r'\blds\b', mods) is not None
            self.lds = islds
            if mn in ('buffer_wbl2', 'buffer_inv'):
                pass
            elif '_load' in mn and not islds:
                self.w = set(R[0])
                for x in R[1:]:
                    self.r |= x
            else:
                for x in R:
                    self.r |= x
                if islds:
                    self.r |= {('s', 'm0')}
                if '_store' in mn and ('x3' in mn or 'x4' in mn):
                    self.storedata = R[0] if mn.startswith('buffer_') else R[1]
        elif mn.startswith('s_'):
            if mn == 's_nop':
                self.kind = 'nop'
                self.states = int(ops[0], 0) + 1
            elif mn.startswith('s_cbranch') or mn == 's_branch':
                self.kind = 'branch'
                self.target = ops[0]
            elif mn in ('s_waitcnt', 's_barrier', 's_endpgm', 's_setprio', 's_sleep'):
                self.kind = 'other'
            elif mn.startswith('s_load') or mn in ('s_memtime', 's_memrealtime'):
                self.kind = 'smem'
                self.w = set(R[0])
                for x in R[1:]:
                    self.r |= x
            elif mn.startswith('s_cmp') or mn.startswith('s_bitcmp'):
                self.kind = 'salu'
                for x in R:
                    self.r |= x
            else:
                self.kind = 'salu'
                self.w = set(R[0])
                for x in R[1:]:
                    self.r |= x
                if 'saveexec' in mn:
                    self.w |= {('s', 'exec')}
        else:
            raise ValueError('unknown instruction ' + text)


def _v(s):
    return {x for x in s if x[0] == 'v'}


def _s(s):
    return {x for x in s if x[0] == 's'}


def need(p, c):
    n = 0
    if p.kind == 'valu':
        pw = _v(p.w)
        if pw:
            if c.kind == 'mfma' and pw & c.r:
                n = max(n, 2)
            if c.kind == 'valu':
                if p.base in TRANS and c.base not in TRANS and pw & c.r:
                    n = max(n, 1)
                if (c.base.startswith('v_permlane') or c.dpp) and pw & c.r:
                    n = max(n, 2)
                if c.base in ('v_readfirstlane_b32', 'v_readlane_b32') and pw & c.r:
                    n = max(n, 1)
        sw = _s(p.w)
        if sw:
            if c.kind == 'valu' and (sw - {('s', 'exec')}) & c.r:
                n = max(n, 4 if c.base in ('v_readlane_b32', 'v_writelane_b32', 'v_div_fmas_f32') else 2)
            if c.kind == 'vmem' and sw & c.r:
                n = max(n, 5)
    if p.kind == 'mfma':
        big = {4: 8, 8: 12}[p.passes]
        if c.kind == 'valu' and p.w & (c.r | c.w):
            n = max(n, big)
        if c.kind in ('ds', 'vmem') and p.w & (c.r | c.w):
            n = max(n, big)
        if c.kind == 'mfma':
            if p.w & c.srcAB:
                n = max(n, big)
            if p.w & c.srcC and not (p.w == c.srcC and p.passes == c.passes):
                n = max(n, big - 2)
            if p.w & c.w and not (p.w == c.srcC):
                n = max(n, big - 2)
        if c.kind == 'valu' and p.srcC & c.w:
            n = max(n, {4: 3, 8: 7}[p.passes])
    if p.kind == 'vmem' and p.storedata:
        if c.kind == 'valu' and p.storedata & c.w:
            n = max(n, 2)
        elif p.storedata & c.w:
            n = max(n, 1)
    if p.kind == 'salu' and ('s', 'm0') in p.w and c.kind == 'vmem' and getattr(c, 'lds', False):
        n = max(n, 1)
    return n


MAXD = 12


def hazard_pass(lines):
    ins = [Ins(l) for l in lines]
    inserted = 0
    while True:
        labels = {x.label: i for i, x in enumerate(ins) if x.label}
        jumps = {}
        for i, x in enumerate(ins):
            if x.kind == 'branch':
                jumps.setdefault(labels[x.target], []).append(i)

        def preds(i):
            out = []
            if i > 0 and ins[i - 1].mn not in ('s_branch', 's_endpgm'):
                out.append(i - 1)
            out += jumps.get(i, [])
            return out
        fix = None
        for i, c in enumerate(ins):
            if c.kind not in ('valu', 'mfma', 'ds', 'vmem'):
                continue
            worst = 0
            stack = [(p, 0) for p in preds(i)]
            seen = {}
            while stack:
                p, d = stack.pop()
                if seen.get(p, 99) <= d:
                    continue
                seen[p] = d
                x = ins[p]
                if x.kind in ('valu', 'mfma', 'vmem', 'salu'):
                    r = need(x, c)
                    if r > d:
                        worst = max(worst, r - d)
                d2 = d + x.states
                if d2 < MAXD:
                    for q in preds(p):
                        stack.append((q, d2))
            if worst:
                fix = (i, worst)
                break
        if not fix:
            break
        i, w = fix
        ins.insert(i, Ins(f'    s_nop {w - 1}'))
        inserted += 1
    return [x.text for x in ins], inserted


class Asm:
    def __init__(self):
        self.lines = []
        self._n = 0

    def __call__(self, text):
        for l in text.split('\n'):
            l = l.strip()
            if not l:
                continue
            self.lines.append(l if l.endswith(':') else '    ' + l)

    def label(self, name):
        self.lines.append(name + ':')

    def uniq(self, base):
        self._n += 1
        return f'{base}_{self._n}'


class Cnt:
    def __init__(self, asm, name, maxv):
        self.a = asm
        self.name = name
        self.max = maxv
        self.q = []
        self.done = 0

    def issue(self, tag=None):
        self.q.append(tag)

    def wait(self, tag):
        idx = max(i for i, t in enumerate(self.q) if t == tag)
        if idx < self.done:
            return
        n = len(self.q) - 1 - idx
        if n > self.max:
            n = self.max
        self.a(f's_waitcnt {self.name}({n})')
        self.done = len(self.q) - n

    def waitall(self):
        self.a(f's_waitcnt {self.name}(0)')
        self.done = len(self.q)


def vr(a, n=1):
    return f'v{a}' if n == 1 else f'v[{a}:{a + n - 1}]'


def sr(a, n=1):
    return f's{a}' if n == 1 else f's[{a}:{a + n - 1}]'


def spread(lines, cap=2, tail=1, back_wait=2, fwd=4):
    ins = [Ins(l) for l in lines]
    M = [x for x in ins if x.kind == 'mfma']
    n = len(M)
    F = []
    g = 0
    for x in ins:
        if x.kind == 'mfma':
            g += 1
        elif x.states == 0 or (F and F[-1][0][-1].kind == 'branch'):
            F[-1][0].append(x)
        else:
            F.append([[x], g])
    lo, hi, cur, sz = [], [], [], []
    for grp, p in F:
        w = set().union(*[x.w for x in grp])
        r = set().union(*[x.r for x in grp])
        l = 0
        for k in range(p):
            if (w & (M[k].r | M[k].w)) or (r & M[k].w):
                l = k + 1
        h = n
        for k in range(n - 1, p - 1, -1):
            if (w & (M[k].r | M[k].w) and grp[0].kind in ('valu', 'salu')) or (r & M[k].w):
                h = k
        if grp[0].mn == 's_waitcnt':
            h = p
            l = max(l, p - back_wait)
        h = min(h, p + fwd)
        lo.append(l)
        hi.append(max(h, p))
        cur.append(p)
        sz.append(sum(1 for x in grp if x.states))

    def load(gp):
        gs = (0, n) if gp in (0, n) else (gp,)
        return sum(s for s, c in zip(sz, cur) if c in gs) + (tail if gp in (0, n) else 0)

    def chain(gp, d):
        moves = []
        saved = list(cur)
        while True:
            idx = [i for i, c in enumerate(cur) if c == gp]
            if not idx:
                break
            i = idx[-1] if d > 0 else idx[0]
            t_ = gp + d
            if not (lo[i] <= t_ <= hi[i]) or t_ < 0 or t_ > n:
                break
            cur[i] = t_
            moves.append(i)
            if load(t_) <= cap:
                res = list(cur)
                cur[:] = saved
                return res, len(moves)
            gp = t_
        cur[:] = saved
        return None
    progress = True
    while progress:
        progress = False
        for gp in range(n + 1):
            if load(gp) > cap:
                c = [x for x in (chain(gp, 1), chain(gp, -1)) if x]
                if c:
                    cur[:] = min(c, key=lambda x: x[1])[0]
                    progress = True
    out = []
    for gp in range(n + 1):
        for (grp, p), c in zip(F, cur):
            if c == gp:
                out += grp
        if gp < n:
            out.append(M[gp])
    return [x.text for x in out]
```

```python
import sys, struct
from asmlib import Asm, Cnt, hazard_pass, vr, sr, spread

NAME = 'concat_heads__linear_attn_block__ssm_conv_s5__prompt'

WS_FLAG = 0x1000
WS_AGG = 0x10000
WS_KVP = 0x30000
WS_S2 = 0xC0000
WS_X2 = 0xF0000
WS_O = 0x100000
WS_H = 0x400000
WS_STAMP = 0x1000000
WS_DUMP = 0x1100000
WS_SIZE = 0x10000000
OOB = 0x7fff0000
SPIN = 200000

P_AX, P_WQKV, P_WO, P_BX, P_LRE, P_LIM, P_BRE, P_BIM = 4, 6, 8, 10, 12, 14, 16, 18
P_CRE, P_CIM, P_LDT, P_DSK, P_OUT, P_DBG, P_WS = 20, 22, 24, 26, 28, 30, 32
S_WAVE, S_SIDE = 34, 35
SRD0, SRD1, SRD2, SRDW = 36, 40, 44, 48
S_CH, S_G, S_I4, S_W, S_TAG = 52, 53, 54, 55, 56
S_KC, S_SLOT = 57, 58
S_T0, S_T1, S_T2, S_T3, S_T4, S_T5 = 59, 60, 61, 62, 63, 64
S_CNT, S_SPIN, S_FAST = 65, 66, 67
S_M = 68
S_XCC = 76
S_KVG, S_KVO, S_BASE, S_KVB = 90, 91, 92, 93
S_ST = 80


def f2u(x):
    return struct.unpack('<I', struct.pack('<f', x))[0]


LOG2E = 1.4426950408889634


def head(x):
    return x // 20


def kvmask(j, b):
    return sum(1 << (16*g+i) for i in range(16) for g in range(4) if head(16*j+i) == head(16*b+4*g))


pieces = [(j, b) for b in range(5) for j in range(5) if kvmask(j, b)]


class Gen:
    def __init__(self, **opt):
        self.o = dict(stamps=False, dump=None, fast=True, wt=False, outx='sc1', codepf=True, rot='2', bo=26, na1=1, nc1=3, nc2=3, mw='', bdir=True, spread=True, pf=False, half=True, wb=False, xoff=True, pp=False, rotb=True)
        self.o.update(opt)
        self.wt0 = self.o['wt']
        for k_ in ('na1', 'nc1', 'nc2'):
            self.o[k_] = int(self.o[k_])
        self.a = Asm()
        self.role = ''
        self.sreg = 248

    def srd(self, s, ptr, size):
        a = self.a
        a(f's_mov_b32 s{s}, s{ptr}\ns_mov_b32 s{s+1}, s{ptr+1}\ns_mov_b32 s{s+2}, {size}\ns_mov_b32 s{s+3}, 0x20000')

    def stamp(self, k):
        if self.o.get('probe') == f'{self.role}{k}':
            self.a('s_memrealtime s[84:85]\ns_waitcnt lgkmcnt(0)')
        if self.o['stamps'] and (self.o.get('lst') or not isinstance(k, tuple) or k[0] == 88):
            if self.o.get('rt'):
                self.a(f's_memrealtime s[{S_ST+2}:{S_ST+3}]\ns_waitcnt lgkmcnt(0)\ns_sub_u32 s{S_ST+2}, s{S_ST+2}, s78\ns_mul_i32 s{S_ST+2}, s{S_ST+2}, 10')
            else:
                self.a(f's_memtime s[{S_ST+2}:{S_ST+3}]\ns_waitcnt lgkmcnt(0)\ns_sub_u32 s{S_ST+2}, s{S_ST+2}, s{S_ST}')
            if isinstance(k, tuple):
                self.a(f's_add_u32 s{S_ST+3}, s{k[0]}, {k[1]}\ns_mov_b32 s{S_ST+4}, m0\ns_mov_b32 m0, s{S_ST+3}\nv_writelane_b32 v{self.sreg}, s{S_ST+2}, m0\ns_mov_b32 m0, s{S_ST+4}')
            else:
                self.a(f'v_writelane_b32 v{self.sreg}, s{S_ST+2}, {k}')

    def finish(self):
        a = self.a
        if self.o['stamps']:
            self.stamp(9)
            a(f's_memrealtime s[{S_M}:{S_M+1}]\ns_waitcnt lgkmcnt(0)\nv_writelane_b32 v{self.sreg}, s78, 62\nv_writelane_b32 v{self.sreg}, s{S_M}, 63')
            a(f's_lshl_b32 s{S_T0}, s2, 3\ns_add_u32 s{S_T0}, s{S_T0}, s{S_WAVE}\ns_lshl_b32 s{S_T0}, s{S_T0}, 8\ns_add_u32 s{S_T0}, s{S_T0}, {WS_STAMP}')
            a(f's_mov_b64 exec, -1\nv_lshlrev_b32 v1, 2, v0\nbuffer_store_dword v{self.sreg}, v1, s[{SRDW}:{SRDW+3}], s{S_T0} offen')
        if self.o.get('probe') and self.o['probe'][:2] == self.role:
            self.stamp(9)
            L = a.uniq('L_probe')
            a(f's_waitcnt vmcnt(0)\ns_sub_u32 s84, s84, s78\ns_lshl_b32 s84, s84, 2\ns_add_u32 s84, s84, {int(self.o.get("pbase", 3000))}')
            a.label(L)
            a(f's_memrealtime s[{S_M}:{S_M+1}]\ns_waitcnt lgkmcnt(0)\ns_sub_u32 s{S_M}, s{S_M}, s78\ns_sleep 4\ns_cmp_lt_u32 s{S_M}, s84\ns_cbranch_scc1 {L}')
        if self.o.get('pad'):
            L = a.uniq('L_pad')
            if self.o.get('padwb'):
                L2, L3 = a.uniq('L_pad'), a.uniq('L_pad')
                a(f's_lshr_b32 s{S_T0}, s2, 3\ns_or_b32 s{S_T0}, s{S_T0}, s{S_WAVE}\ns_cmp_lg_u32 s{S_T0}, 0\ns_cbranch_scc1 {L3}')
                a.label(L2)
                a(f's_memrealtime s[{S_M}:{S_M+1}]\ns_waitcnt lgkmcnt(0)\ns_sub_u32 s{S_M}, s{S_M}, s78\ns_sleep 4\ns_cmp_lt_u32 s{S_M}, 3000\ns_cbranch_scc1 {L2}')
                a('s_waitcnt vmcnt(0)\nbuffer_wbl2 sc1\ns_waitcnt vmcnt(0)')
                a.label(L3)
            a.label(L)
            if self.o['pad'] == 'rt':
                a(f's_memrealtime s[{S_M}:{S_M+1}]\ns_waitcnt lgkmcnt(0)\ns_sub_u32 s{S_M}, s{S_M}, s78\ns_sleep 4\ns_cmp_lt_u32 s{S_M}, 4000\ns_cbranch_scc1 {L}')
            else:
                a(f's_memtime s[{S_M}:{S_M+1}]\ns_waitcnt lgkmcnt(0)\ns_sub_u32 s{S_M}, s{S_M}, s{S_ST}\ns_sleep 4\ns_cmp_lt_u32 s{S_M}, 96000\ns_cbranch_scc1 {L}')
        a('s_endpgm')

    def dump(self, name, regs):
        if self.o['dump'] != name:
            return
        a = self.a
        a(f's_lshl_b32 s{S_T0}, s2, 2\ns_add_u32 s{S_T0}, s{S_T0}, s{S_W}\ns_lshl_b32 s{S_T0}, s{S_T0}, 16\ns_add_u32 s{S_T0}, s{S_T0}, {WS_DUMP}')
        a('s_nop 7\ns_nop 7\nv_lshlrev_b32 v255, 2, v0')
        for n, r in enumerate(regs):
            a(f'buffer_store_dword v{r}, v255, s[{SRDW}:{SRDW+3}], s{S_T0} offen\ns_add_u32 s{S_T0}, s{S_T0}, 256')
        a('s_waitcnt vmcnt(0)')

    def execmask(self, m):
        a = self.a
        lo, hi = m & 0xffffffff, m >> 32
        if m == (1 << 64) - 1:
            a('s_mov_b64 exec, -1')
        else:
            a(f's_mov_b32 exec_lo, {lo:#x}\ns_mov_b32 exec_hi, {hi:#x}')

    def div10(self, dst_q, dst_r, src, tmp=None):
        a = self.a
        a(f'v_mul_u32_u24 v{dst_q}, 6554, v{src}\nv_lshrrev_b32 v{dst_q}, 16, v{dst_q}')
        a(f'v_mad_i32_i24 v{dst_r}, v{dst_q}, -10, v{src}')

    def period_offsets(self, base):
        a = self.a
        a(f's_mul_i32 s{S_T0}, s{S_G}, 160')
        for n in range(5):
            a(f'v_add_u32 v250, {64*n}, v0')
            self.div10(251, 252, 250)
            a(f'v_mul_u32_u24 v251, 1280, v251\nv_lshl_add_u32 v251, v252, 4, v251\nv_add_u32 v{base+n}, s{S_T0}, v251')

    def start_chunk(self, dst):
        a = self.a
        if not self.o['rot']:
            a(f's_mov_b32 s{dst}, 0')
            return
        if self.o['rot'] in ('2', '2i', '3', '4', '4i'):
            r = self.o['rot']
            a(f's_mov_b32 s{dst}, s{S_I4}' if r.endswith('i') else f's_add_u32 s{dst}, s{S_I4}, s{S_G}')
            if r[0] == '2':
                a(f's_and_b32 s{dst}, s{dst}, 1\ns_mul_i32 s{dst}, s{dst}, 5')
            elif r[0] == '3':
                a(f's_mul_i32 s{S_T0}, s{dst}, 86\ns_lshr_b32 s{S_T0}, s{S_T0}, 8\ns_mul_i32 s{S_T0}, s{S_T0}, 3\ns_sub_u32 s{dst}, s{dst}, s{S_T0}')
                a(f's_mul_i32 s{dst}, s{dst}, 10\ns_add_u32 s{dst}, s{dst}, 1\ns_mul_i32 s{dst}, s{dst}, 86\ns_lshr_b32 s{dst}, s{dst}, 8')
            else:
                a(f's_and_b32 s{dst}, s{dst}, 3\ns_mul_i32 s{dst}, s{dst}, 5\ns_add_u32 s{dst}, s{dst}, 1\ns_lshr_b32 s{dst}, s{dst}, 1')
            if self.o['xoff']:
                a(f's_lshr_b32 s{S_T0}, s{S_CH}, 2\ns_add_u32 s{dst}, s{dst}, s{S_T0}')
                a(f's_cmp_ge_u32 s{dst}, 10\ns_cselect_b32 s{S_T0}, 10, 0\ns_sub_u32 s{dst}, s{dst}, s{S_T0}')
            return
        a(f's_mul_i32 s{dst}, s{S_I4}, 5\ns_add_u32 s{dst}, s{dst}, {0 if self.o["pf"] else 1}\ns_lshr_b32 s{dst}, s{dst}, 1')
        if self.o['rotb']:
            a(f's_mul_i32 s{S_T0}, s{S_G}, 5\ns_lshr_b32 s{S_T0}, s{S_T0}, 2\ns_add_u32 s{dst}, s{dst}, s{S_T0}')
            a(f's_cmp_ge_u32 s{dst}, 10\ns_cselect_b32 s{S_T0}, 10, 0\ns_sub_u32 s{dst}, s{dst}, s{S_T0}')
        if self.o['xoff']:
            a(f's_lshr_b32 s{S_T0}, s{S_CH}, 2\ns_add_u32 s{dst}, s{dst}, s{S_T0}')
            a(f's_cmp_ge_u32 s{dst}, 10\ns_cselect_b32 s{S_T0}, 10, 0\ns_sub_u32 s{dst}, s{dst}, s{S_T0}')

    def dense_pf(self, srd, nl, base_code):
        a = self.a
        a(base_code)
        a('v_lshlrev_b32 v246, 7, v0')
        for i in range(0, nl, 64):
            n = min(64, nl - i)
            if n < 64:
                self.execmask((1 << n) - 1)
            a(f'buffer_load_dword v247, v246, s[{srd}:{srd+3}], s{S_T0} offen')
            if n < 64:
                a('s_mov_b64 exec, -1')
            elif i + 64 < nl:
                a(f's_add_u32 s{S_T0}, s{S_T0}, 8192')

    def pp_x(self):
        self.dense_pf(SRD0, 40, f's_lshl_b32 s{S_T0}, s{S_CH}, 3\ns_add_u32 s{S_T0}, s{S_T0}, s{S_G}\ns_lshl_b32 s{S_T0}, s{S_T0}, 2\ns_add_u32 s{S_T0}, s{S_T0}, s{S_W}\ns_mul_i32 s{S_T0}, s{S_T0}, 5120')

    def mod10(self, r):
        if self.o['xoff']:
            self.a(f's_lshr_b32 s{S_T4}, s{S_CH}, 2\ns_add_u32 s{r}, s{r}, s{S_T4}')
            self.a(f's_cmp_ge_u32 s{r}, 10\ns_cselect_b32 s{S_T4}, 10, 0\ns_sub_u32 s{r}, s{r}, s{S_T4}')
        self.a(f's_cmp_ge_u32 s{r}, 10\ns_cselect_b32 s{S_T4}, 10, 0\ns_sub_u32 s{r}, s{r}, s{S_T4}')

    def pf_x(self):
        a = self.a
        L = a.uniq('L_pfx')
        a(f's_cmp_lg_u32 s{S_W}, 3\ns_cbranch_scc1 {L}')
        a(f's_mul_i32 s{S_T0}, s{S_I4}, 5\ns_lshr_b32 s{S_T0}, s{S_T0}, 1\ns_cmp_ge_u32 s{S_G}, 4\ns_cselect_b32 s{S_T1}, 9, 4\ns_add_u32 s{S_T0}, s{S_T0}, s{S_T1}')
        self.mod10(S_T0)
        a(f's_lshl_b32 s{S_T0}, s{S_T0}, 7\ns_and_b32 s{S_T1}, s{S_G}, 3\ns_lshl_b32 s{S_T2}, s{S_CH}, 2\ns_add_u32 s{S_T1}, s{S_T1}, s{S_T2}')
        a(f's_mul_i32 s{S_T1}, s{S_T1}, {32*1280}\ns_add_u32 s{S_T0}, s{S_T0}, s{S_T1}\nv_mul_u32_u24 v246, 1280, v0\ns_mov_b32 exec_hi, 0')
        a(f'buffer_load_dword v247, v246, s[{SRD0}:{SRD0+3}], s{S_T0} offen\ns_mov_b64 exec, -1')
        a.label(L)

    def pf_chunk(self):
        a = self.a
        a(f's_mul_i32 s{S_T0}, s{S_G}, 5\ns_lshr_b32 s{S_T0}, s{S_T0}, 2\ns_cmp_ge_u32 s{S_I4}, 2\ns_cselect_b32 s{S_T1}, 9, 4\ns_add_u32 s{S_T0}, s{S_T0}, s{S_T1}')
        self.mod10(S_T0)

    def next_kc(self):
        a = self.a
        a(f's_add_u32 s{S_KC}, s{S_KC}, 1\ns_cmp_eq_u32 s{S_KC}, 10\ns_cselect_b32 s{S_KC}, 0, s{S_KC}')

    def make_tag(self):
        self.a(f's_mul_i32 s{S_TAG}, s{S_TAG}, 1664525\ns_add_u32 s{S_TAG}, s{S_TAG}, 1013904223\ns_max_u32 s{S_TAG}, s{S_TAG}, 16')

    def flag_base(self, dst):
        a = self.a
        a(f's_lshl_b32 s{dst}, s{S_SIDE}, 4\ns_add_u32 s{dst}, s{dst}, s{S_CH}\ns_lshl_b32 s{dst}, s{dst}, 10\ns_add_u32 s{dst}, s{dst}, {WS_FLAG}')

    def publish_xcc(self, vt=250):
        a = self.a
        L = a.uniq('L_nox')
        a(f's_cmp_lg_u32 s{S_W}, 3\ns_cbranch_scc1 {L}')
        self.flag_base(S_T0)
        a(f's_lshl_b32 s{S_T1}, s{S_G}, 2\ns_add_u32 s{S_T0}, s{S_T0}, s{S_T1}')
        a(f's_xor_b32 s{S_T1}, s{S_TAG}, s{S_XCC}\nv_mov_b32 v{vt}, s{S_T1}\nv_mov_b32 v{vt+1}, 512\ns_mov_b64 exec, 1')
        a(f'buffer_store_dword v{vt}, v{vt+1}, s[{SRDW}:{SRDW+3}], s{S_T0} offen sc1\ns_mov_b64 exec, -1')
        a.label(L)

    def spin_check(self, top, done):
        a = self.a
        a(f's_add_u32 s{S_SPIN}, s{S_SPIN}, 1\ns_cmp_lt_u32 s{S_SPIN}, {SPIN}\ns_cbranch_scc1 {top}')

    def xcc_issue(self, vt):
        a = self.a
        self.flag_base(S_FAST)
        a(f's_lshl_b32 s{S_T5}, s{S_W}, 7\ns_add_u32 s{S_T5}, s{S_T5}, s{S_FAST}\ns_add_u32 s{S_FAST}, s{S_FAST}, 512')
        a(f's_mov_b64 exec, 0xff\nv_lshlrev_b32 v{vt}, 2, v0')
        a(f'buffer_load_dword v{vt+2}, v{vt}, s[{SRDW}:{SRDW+3}], s{S_T5} offen sc1')
        a(f'buffer_load_dword v{vt+1}, v{vt}, s[{SRDW}:{SRDW+3}], s{S_FAST} offen sc1\ns_mov_b64 exec, -1')

    def xcc_eval(self, vt):
        a = self.a
        top, chk, ok = a.uniq('L_xp'), a.uniq('L_xc'), a.uniq('L_xok')
        a(f's_mov_b64 exec, 0xff\ns_mov_b32 s{S_SPIN}, 0\ns_branch {chk}')
        a.label(top)
        a(f'buffer_load_dword v{vt+1}, v{vt}, s[{SRDW}:{SRDW+3}], s{S_FAST} offen sc1')
        a.label(chk)
        a(f's_waitcnt vmcnt(0)\nv_xor_b32 v{vt+1}, s{S_TAG}, v{vt+1}\nv_cmp_le_u32 vcc, 16, v{vt+1}\ns_cbranch_vccz {ok}')
        self.spin_check(top, ok)
        a.label(ok)
        a(f'v_cmp_ne_u32 vcc, s{S_XCC}, v{vt+1}\ns_nop 0\ns_cmp_eq_u64 vcc, 0\ns_cselect_b32 s{S_FAST}, 1, 0\ns_mov_b64 exec, -1')
        if not self.o['fast']:
            a(f's_mov_b32 s{S_FAST}, 0')

    def hop2(self, vt):
        a = self.a
        slow, go, top, ok, done = (a.uniq(x) for x in ('L_slow', 'L_go', 'L_fp', 'L_fok', 'L_fdone'))
        self.flag_base(S_T4)
        a(f's_lshl_b32 s{S_T5}, s{S_W}, 7\ns_add_u32 s{S_T4}, s{S_T4}, s{S_T5}')
        a(f's_lshl_b32 s{S_T5}, s{S_G}, 2\ns_add_u32 s{S_T5}, s{S_T5}, s{S_T4}')
        a(f'v_mov_b32 v{vt}, s{S_TAG}\nv_mov_b32 v{vt+1}, 0\nv_lshlrev_b32 v{vt+2}, 2, v0\ns_mov_b32 s{S_SPIN}, 0')
        a(f's_waitcnt vmcnt(0)\ns_mov_b64 exec, 1\ns_cmp_eq_u32 s{S_FAST}, 0\ns_cbranch_scc1 {slow}')
        a(f'buffer_store_dword v{vt}, v{vt+1}, s[{SRDW}:{SRDW+3}], s{S_T5} offen\ns_branch {go}')
        a.label(slow)
        if not self.o['wt']:
            a('buffer_wbl2 sc1\ns_waitcnt vmcnt(0)')
        a(f'buffer_store_dword v{vt}, v{vt+1}, s[{SRDW}:{SRDW+3}], s{S_T5} offen sc1')
        a.label(go)
        a('s_mov_b64 exec, 0xff')
        return (top, ok, done)

    def hop2_wait(self, vt, labels):
        a = self.a
        top, ok, done = labels
        a('s_mov_b64 exec, 0xff')
        a.label(top)
        a(f'buffer_load_dword v{vt+1}, v{vt+2}, s[{SRDW}:{SRDW+3}], s{S_T4} offen sc1\ns_waitcnt vmcnt(0)')
        a(f'v_cmp_ne_u32 vcc, s{S_TAG}, v{vt+1}\ns_cbranch_vccz {ok}')
        self.spin_check(top, ok)
        a.label(ok)
        a('s_mov_b64 exec, -1')
        if not self.o['wt']:
            a(f's_cmp_eq_u32 s{S_FAST}, 1\ns_cbranch_scc1 {done}')
            a('buffer_inv sc1\ns_waitcnt vmcnt(0)')
            a.label(done)

    def write_back(self):
        if not self.o['wb']:
            return
        a = self.a
        L = a.uniq('L_nwb')
        a(f's_lshr_b32 s{S_T0}, s2, 3\ns_or_b32 s{S_T0}, s{S_T0}, s{S_W}\ns_cmp_lg_u32 s{S_T0}, 0\ns_cbranch_scc1 {L}')
        a('buffer_wbl2 sc1\ns_waitcnt vmcnt(0)')
        a.label(L)

    def end_write_back(self):
        if self.role[0] not in self.o.get('wbe', ''):
            return
        a = self.a
        L = a.uniq('L_nwe')
        a(f's_lshr_b32 s{S_T0}, s2, 3\ns_or_b32 s{S_T0}, s{S_T0}, s{S_W}\ns_cmp_lg_u32 s{S_T0}, 0\ns_cbranch_scc1 {L}')
        a('buffer_wbl2 sc1')
        a.label(L)

    def epoch_update(self, chunk):
        a = self.a
        L = a.uniq('L_noep')
        a(f's_or_b32 s{S_T0}, s{S_G}, s{S_W}\ns_cmp_lg_u32 s{S_T0}, 0\ns_cbranch_scc1 {L}')
        a(f's_cmp_lg_u32 s{S_CH}, {chunk}\ns_cbranch_scc1 {L}')
        a(f's_lshl_b32 s{S_T0}, s{S_SIDE}, 8\nv_mov_b32 v250, s{S_TAG}\nv_mov_b32 v251, 0\ns_mov_b64 exec, 1')
        a(f'buffer_store_dword v250, v251, s[{SRDW}:{SRDW+3}], s{S_T0} offen\ns_mov_b64 exec, -1')
        a.label(L)

    def out_prepare(self, vreg, coff):
        a = self.a
        self.srd(SRD2, P_OUT, 2048 * 1280 * 4)
        a(f'v_lshrrev_b32 v253, 4, v0\nv_mul_u32_u24 v253, {4*5120}, v253\nv_and_b32 v254, 15, v0\nv_lshl_add_u32 v253, v254, 2, v253')
        a(f's_lshl_b32 s{S_T0}, s{S_CH}, 2\ns_add_u32 s{S_T0}, s{S_T0}, s{S_W}\ns_mul_i32 s{S_T0}, s{S_T0}, {32*5120}')
        a(f's_mul_i32 s{S_T1}, s{S_G}, 320\ns_add_u32 s{S_T0}, s{S_T0}, s{S_T1}')
        if coff:
            a(f's_add_u32 s{S_T0}, s{S_T0}, {coff}')
        a(f'v_add_u32 v{vreg}, s{S_T0}, v253')

    def out_soffsets(self):
        for rb in range(2):
            for r in range(4):
                self.a(f's_mov_b32 s{94+4*rb+r}, {(16*rb+r)*5120}')

    def out_block(self, acc, vreg, j):
        return [f'buffer_store_dword v{acc(j, rb)+r}, v{vreg}, s[{SRD2}:{SRD2+3}], s{94+4*rb+r} offen offset:{64*j} {self.o["outx"]}'
                for rb in range(2) for r in range(4)]

    def out_stores(self, acc, vreg):
        a = self.a
        a(f's_mov_b32 s{S_T0}, 0')
        for rb in range(2):
            for r in range(4):
                for j in range(5):
                    a(f'buffer_store_dword v{acc(j, rb)+r}, v{vreg}, s[{SRD2}:{SRD2+3}], s{S_T0} offen offset:{64*j} {self.o["outx"]}')
                if (rb, r) != (1, 3):
                    a(f's_add_u32 s{S_T0}, s{S_T0}, {5120 if r < 3 else 13*5120}')

    def prologue(self):
        a = self.a
        a('s_cmp_ge_u32 s2, 256\ns_cbranch_scc1 L_exit')
        a('s_load_dwordx16 s[4:19], s[0:1], 0\ns_load_dwordx8 s[20:27], s[0:1], 64\ns_load_dwordx4 s[28:31], s[0:1], 96\ns_load_dwordx2 s[32:33], s[0:1], 112')
        if self.o.get('ipf'):
            a(f's_getpc_b64 s[{S_M}:{S_M+1}]')
            a.label('L_ipf')
            for lab in ('L_BL', 'L_AC', 'L_BC'):
                a(f's_add_u32 s{S_M+2}, s{S_M}, {lab}-L_ipf\ns_addc_u32 s{S_M+3}, s{S_M+1}, 0')
                for k in range(int(self.o['ipf'])):
                    a(f's_load_dword s89, s[{S_M+2}:{S_M+3}], {64*k}')
        if self.o.get('probe'):
            a('s_memrealtime s[78:79]\ns_memrealtime s[84:85]')
        if self.o['stamps'] or self.o.get('pad'):
            a(f's_memrealtime s[78:79]\ns_memtime s[{S_ST}:{S_ST+1}]')
            a('v_mov_b32 v248, -1\nv_mov_b32 v7, -1')
        a(f'v_lshrrev_b32 v1, 6, v0\nv_and_b32 v0, 63, v0\nv_readfirstlane_b32 s{S_WAVE}, v1')
        a(f's_and_b32 s{S_T0}, s2, 7\ns_lshr_b32 s{S_T1}, s2, 3\ns_lshr_b32 s{S_SIDE}, s{S_T0}, 2')
        a(f's_lshr_b32 s{S_I4}, s{S_T1}, 3\ns_and_b32 s{S_G}, s{S_T1}, 7')
        a(f's_and_b32 s{S_T0}, s{S_T0}, 3\ns_lshl_b32 s{S_CH}, s{S_T0}, 2\ns_add_u32 s{S_CH}, s{S_CH}, s{S_I4}')
        a(f's_getreg_b32 s{S_XCC}, hwreg(HW_REG_XCC_ID, 0, 4)')
        a(f's_and_b32 s{S_W}, s{S_WAVE}, 3')
        if self.o.get('delay'):
            sd, ticks = self.o['delay'][0], int(self.o['delay'][1:])
            a(f's_cmp_lg_u32 s{S_SIDE}, {"ab".index(sd)}\ns_cbranch_scc1 L_nodelay\ns_memrealtime s[{S_M}:{S_M+1}]\ns_waitcnt lgkmcnt(0)')
            a.label('L_delay')
            a(f's_memrealtime s[{S_M+2}:{S_M+3}]\ns_waitcnt lgkmcnt(0)\ns_sub_u32 s{S_M+2}, s{S_M+2}, s{S_M}\ns_cmp_lt_u32 s{S_M+2}, {ticks}\ns_cbranch_scc1 L_delay')
            a.label('L_nodelay')
        a(f's_cmp_eq_u32 s{S_SIDE}, 1\ns_cbranch_scc1 L_B')
        a(f's_cmp_ge_u32 s{S_WAVE}, 4\ns_cbranch_scc1 L_AL\ns_branch L_AC')
        a.label('L_exit')
        a('s_endpgm')
        a.label('L_B')
        a(f's_cmp_ge_u32 s{S_WAVE}, 4\ns_cbranch_scc1 L_BL\ns_branch L_BC')

    def load_epoch(self):
        a = self.a
        a(f's_lshl_b32 s{S_T0}, s{S_SIDE}, 8\ns_load_dword s{S_TAG}, s[{P_WS}:{P_WS+1}], s{S_T0}')

    def x_offsets(self, base, permuted):
        a = self.a
        a(f's_lshl_b32 s{S_T0}, s{S_CH}, 2\ns_add_u32 s{S_T0}, s{S_T0}, s{S_W}\ns_mul_i32 s{S_T0}, s{S_T0}, {32*1280}')
        a('v_lshrrev_b32 v250, 4, v0\nv_and_b32 v251, 7, v0\nv_xor_b32 v250, v250, v251\nv_lshlrev_b32 v250, 4, v250')
        if not permuted:
            a('v_lshrrev_b32 v251, 3, v0')
            step = lambda n: 8 * n
        else:
            a('v_lshrrev_b32 v251, 5, v0\nv_lshlrev_b32 v251, 3, v251\nv_bfe_u32 v252, v0, 3, 1\nv_lshl_add_u32 v251, v252, 2, v251')
            a('v_bfe_u32 v252, v0, 4, 1\nv_add_u32 v251, v251, v252')
            step = lambda n: 16 * (n & 1) + 2 * (n >> 1)
        a(f'v_mul_u32_u24 v251, 1280, v251\nv_add_u32 v251, s{S_T0}, v251')
        a('v_xor_b32 v252, 64, v250\nv_add_u32 v250, v250, v251\nv_add_u32 v252, v252, v251')
        for n in range(4):
            src = 252 if n & 1 else 250
            a(f'v_add_u32 v{base+n}, {step(n)*1280}, v{src}')

    def tlb_touch(self, wsbase, wsper, ptrs):
        mode = self.o.get('tlb', '')
        if not mode:
            return
        a = self.a
        a(f's_lshl_b32 s{S_T0}, s{S_CH}, 2\ns_add_u32 s{S_T0}, s{S_T0}, s{S_W}\ns_mul_i32 s{S_T1}, s{S_T0}, {wsper}\ns_add_u32 s{S_T1}, s{S_T1}, {wsbase}')
        a(f's_mul_i32 s{S_T0}, s{S_T0}, {32*5120}')
        if mode == 's':
            a(f's_load_dword s86, s[{P_WS}:{P_WS+1}], s{S_T1}\ns_load_dword s87, s[{P_OUT}:{P_OUT+1}], s{S_T0}')
            for p in ptrs:
                a(f's_load_dword s88, s[{p}:{p+1}], 0')
        else:
            a(f'v_mov_b32 v246, s{S_T1}\nv_mov_b32 v247, s{S_T0}\nv_mov_b32 v245, 0\ns_mov_b64 exec, 1')
            a(f'global_load_dword v255, v246, s[{P_WS}:{P_WS+1}]\nglobal_load_dword v255, v247, s[{P_OUT}:{P_OUT+1}]')
            for p in ptrs:
                a(f'global_load_dword v255, v245, s[{p}:{p+1}]')
            a('s_mov_b64 exec, -1')

    def code_prefetch(self, first, last):
        if not self.o['codepf']:
            return
        a = self.a
        L = a.uniq('L_pc')
        a(f's_getpc_b64 s[{S_M}:{S_M+1}]')
        a.label(L)
        a(f's_sub_u32 s{S_M}, s{S_M}, {L}-{first}\ns_subb_u32 s{S_M+1}, s{S_M+1}, 0')
        a(f's_lshl_b32 s{S_T0}, s{S_I4}, 3\ns_add_u32 s{S_T0}, s{S_T0}, s{S_G}\ns_lshl_b32 s{S_T0}, s{S_T0}, 7')
        a(f'v_lshlrev_b32 v249, 12, v0\nv_add_u32 v249, s{S_T0}, v249\nv_cmp_gt_u32 vcc, {last}-{first}, v249')
        S = a.uniq('L_pcs')
        a(f's_and_saveexec_b64 s[{S_M+2}:{S_M+3}], vcc\ns_cbranch_execz {S}')
        a(f'global_load_dword v255, v249, s[{S_M}:{S_M+1}]')
        a.label(S)
        a('s_mov_b64 exec, -1')

    def mainloop(self, nblk, acc, XF, WR, vXA, vWA, wread, swapped, slotsize, nslots, release_wait, LEAD=7, slot0=0):
        a = self.a
        R = 10
        NF = 2 * nblk
        assert NF % R == 0
        q = Cnt(a, 'lgkmcnt', 15)

        def rd_x(ks, tagc):
            for rb in range(2):
                a(f'ds_read_b128 {vr(XF+8*ks+4*rb, 4)}, v{vXA+ks} offset:{2048*rb}')
                q.issue(('x', tagc, ks))

        def rd_w(n, tagc):
            ks, j = divmod(n, nblk)
            if j == 0:
                rd_x(ks, tagc)
            for _ in range(wread(n % NF, WR + 4 * (n % R))):
                q.issue(('w', tagc, n))

        def advance():
            for v in [vXA, vXA + 1] + vWA:
                a(f'v_add_u32 v{v}, s{S_T0}, v{v}')
        bar = NF - LEAD
        pos = {}
        for m in range(LEAD, NF):
            pos[m] = m - LEAD
        if release_wait:
            for k, m in enumerate(range(NF - 4, NF)):
                pos[m] = bar - 4 + k // 2
        a(f's_mov_b32 s{S_SLOT}, {slot0}\ns_mov_b32 s{S_CNT}, 0\ns_mov_b32 s{S_T1}, {slotsize}\ns_barrier')
        self.stamp(1)
        for m in range(LEAD):
            rd_w(m, 0)
        texts = []
        Lnb = a.uniq('L_nb')
        for it in range(3):
            start = len(a.lines)
            for n in range(NF):
                ks, j = divmod(n, nblk)
                if n == bar:
                    advance()
                    a(f's_cmp_eq_u32 s{S_CNT}, 9')
                    if release_wait:
                        q.waitall()
                    a(f's_cbranch_scc1 {Lnb}\ns_barrier')
                    a.label(Lnb)
                q.wait(('w', it, n))
                if j == 0:
                    q.wait(('x', it, ks))
                w = vr(WR + 4 * (n % R), 4)
                for rb in range(2):
                    x = vr(XF + 8 * ks + 4 * rb, 4)
                    d = vr(acc(j, rb), 4)
                    if swapped(j):
                        a(f'v_mfma_f32_16x16x32_bf16 {d}, {w}, {x}, {d}')
                    else:
                        a(f'v_mfma_f32_16x16x32_bf16 {d}, {x}, {w}, {d}')
                for m in range(LEAD, NF):
                    if pos[m] == n:
                        rd_w(m, it)
                if n >= bar:
                    rd_w(n - bar, it + 1)
                if n == 2:
                    a(f's_add_u32 s{S_SLOT}, s{S_SLOT}, 1\ns_cmp_eq_u32 s{S_SLOT}, {nslots}')
                    a(f's_cselect_b32 s{S_T0}, {-(nslots-1)*slotsize & 0xffffffff:#x}, s{S_T1}\ns_cselect_b32 s{S_SLOT}, 0, s{S_SLOT}')
                if n == NF - 3:
                    a(f's_add_u32 s{S_CNT}, s{S_CNT}, 1\ns_cmp_lt_u32 s{S_CNT}, 10')
            texts.append(a.lines[start:])
            del a.lines[start:]
        assert texts[1] == texts[2]
        body = texts[1]
        if texts[0] != texts[1]:
            a('s_waitcnt lgkmcnt(0)')
        if self.o.get('x_nomfma'):
            body = [l for l in body if 'v_mfma' not in l]
        if self.o.get('x_nods'):
            body = [l for l in body if 'ds_read' not in l]
        L = a.uniq('L_main')
        a('.p2align 3')
        a.label(L)
        a.lines += spread(body) if self.o['spread'] else body
        a(f's_cbranch_scc1 {L}')
        a('s_waitcnt lgkmcnt(0)')

    A_R0, A_SLOT = 51200, 36864
    A_PART = 131552
    A_KVB = 158432
    A_CNT = 161792
    A_WO = 0

    def g1_setup(self, vPOS):
        a = self.a
        for h, code in enumerate((f's_lshl_b32 s{S_T0}, s{S_W}, 6', f's_mul_i32 s{S_T0}, s{S_W}, 6\ns_add_u32 s{S_T0}, s{S_T0}, 256')):
            vp = vPOS + 3 * h
            a(code + f'\nv_add_u32 v{vp}, s{S_T0}, v0\nv_mul_u32_u24 v{vp+2}, 12, v{vp}\nv_add_u32 v{vp+2}, {self.A_KVB}, v{vp+2}\nv_lshlrev_b32 v{vp}, 4, v{vp}')

    def g1_run(self, vPOS):
        a = self.a
        D = lambda h, n: 24 + 64 * h + 4 * n
        ACC = lambda h: 184 + 6 * h
        TMP = 196
        S_PEND = S_CNT
        ok, top2 = a.uniq('L_gok'), a.uniq('L_gr')
        for k in range(6):
            a(f'v_mov_b64 {vr(ACC(0)+2*k, 2)}, 0')
        a(f's_mov_b32 s{S_SPIN}, 0\ns_mov_b32 s{S_T3}, 0xffff0000\ns_mov_b32 s{S_PEND}, 0xffff\ns_add_u32 s{S_T1}, s{S_KVG}, {16*4480}')

        if int(self.o.get('bo', 0)):
            a(f's_sleep {int(self.o["bo"])}')

        def ask(n, x):
            a(f'buffer_load_dwordx4 {vr(D(0, n), 4)}, v{vPOS}, s[{SRDW}:{SRDW+3}], s{S_T0} offen {x}\ns_mov_b64 exec, 0x3f')
            a(f'buffer_load_dwordx4 {vr(D(1, n), 4)}, v{vPOS+3}, s[{SRDW}:{SRDW+3}], s{S_T0} offen {x}\ns_mov_b64 exec, -1')

        def take(n, left, bit):
            sk = a.uniq('L_gs')
            a(f's_waitcnt vmcnt({left})\nv_cmp_ne_u32 vcc, s{S_TAG}, v{D(0, n)+3}\nv_cmp_ne_u32 s[{S_M}:{S_M+1}], s{S_TAG}, v{D(1, n)+3}')
            a(f's_and_b64 s[{S_M}:{S_M+1}], s[{S_M}:{S_M+1}], 63\ns_or_b64 s[{S_M}:{S_M+1}], s[{S_M}:{S_M+1}], vcc\ns_cbranch_scc1 {sk}')
            a(f's_bitset0_b32 s{S_PEND}, {bit}')
            for h in range(2):
                for k in range(3):
                    a(f'v_lshlrev_b32 v{TMP+2*k}, 16, v{D(h, n)+k}\nv_and_b32 v{TMP+2*k+1}, s{S_T3}, v{D(h, n)+k}')
                for k in range(3):
                    a(f'v_pk_add_f32 {vr(ACC(h)+2*k, 2)}, {vr(ACC(h)+2*k, 2)}, {vr(TMP+2*k, 2)}')
            a.label(sk)
        a(f's_mul_i32 s{S_T0}, s{S_I4}, {4*4480}\ns_add_u32 s{S_T0}, s{S_T0}, s{S_KVG}')
        for n in range(16):
            ask(n, self.o.get('g1', 'sc1'))
            if n < 15:
                a(f's_add_u32 s{S_T0}, s{S_T0}, 4480')
                if n % 4 == 3:
                    a(f's_cmp_eq_u32 s{S_T0}, s{S_T1}\ns_cselect_b32 s{S_T0}, s{S_KVG}, s{S_T0}')
        for n in range(16):
            take(n, 30 - 2 * n, n)
        self.stamp(12)
        a(f's_cmp_eq_u32 s{S_PEND}, 0\ns_cbranch_scc1 {ok}')
        a.label(top2)
        a(f's_mov_b32 s{S_T1}, s{S_PEND}')
        for n in range(4):
            a(f's_ff1_i32_b32 s{S_ST+14+n}, s{S_T1}\ns_bitset0_b32 s{S_T1}, s{S_ST+14+n}')
            a(f's_lshl_b32 s{S_T0}, s{S_I4}, 2\ns_add_u32 s{S_T0}, s{S_T0}, s{S_ST+14+n}\ns_and_b32 s{S_T0}, s{S_T0}, 15\ns_mul_i32 s{S_T0}, s{S_T0}, 4480')
            a(f's_add_u32 s{S_T0}, s{S_T0}, s{S_KVG}\ns_cmp_lt_i32 s{S_ST+14+n}, 0\ns_cselect_b32 s{S_T0}, {OOB:#x}, s{S_T0}')
            ask(n, 'sc1')
        for n in range(4):
            take(n, 6 - 2 * n, f's{S_ST+14+n}')
        a(f's_cmp_eq_u32 s{S_PEND}, 0\ns_cbranch_scc1 {ok}')
        self.spin_check(top2, ok)
        a.label(ok)
        for h in range(2):
            if h:
                a('s_mov_b64 exec, 0x3f')
            for k in range(3):
                a(f'v_cvt_pk_bf16_f32 v{TMP+3*h+k}, v{ACC(h)+2*k}, v{ACC(h)+2*k+1}\nds_write_b32 v{vPOS+3*h+2}, v{TMP+3*h+k} offset:{4*k}')
        a('s_mov_b64 exec, -1\ns_waitcnt lgkmcnt(0)')

    def g2_setup(self):
        a = self.a
        vG1, vG2, vS2, vK1, vG3, vK3 = 204, 207, 200, 201, 202, 203
        S_S2, S_X2 = 86, 87
        a(f's_mul_i32 s{S_T0}, s{S_I4}, 70\ns_lshl_b32 s{S_T1}, s{S_W}, 4\ns_add_u32 s{S_T1}, s{S_T1}, s{S_T0}')
        a(f'v_add_u32 v252, s{S_T1}, v250\nv_mul_u32_u24 v253, 4480, v251\nv_lshl_add_u32 v{vG1}, v252, 4, v253')
        a(f's_lshl_b32 s{S_T2}, s{S_W}, 1\ns_min_u32 s{S_T2}, s{S_T2}, 4\ns_add_u32 s{S_T2}, s{S_T2}, 64\ns_add_u32 s{S_T5}, s{S_T2}, s{S_T0}')
        a(f'v_and_b32 v253, 1, v0\nv_add_u32 v254, s{S_T5}, v253\nv_bfe_u32 v253, v0, 1, 4\nv_mul_u32_u24 v253, 4480, v253\nv_lshl_add_u32 v{vG2}, v254, 4, v253')
        a(f's_mov_b64 vcc, 0xffff\nv_cndmask_b32 v252, v254, v252, vcc')
        a(f'v_mul_u32_u24 v253, 12, v252\nv_add_u32 v{vK1}, {self.A_KVB}, v253\nv_subrev_u32 v252, s{S_T0}, v252\nv_lshlrev_b32 v{vS2}, 4, v252')
        a(f's_lshl_b32 s{S_T1}, s{S_W}, 6\nv_add_u32 v252, s{S_T1}, v0\nv_mul_u32_u24 v253, 937, v252\nv_lshrrev_b32 v253, 16, v253')
        a(f'v_mul_u32_u24 v254, 70, v253\nv_sub_u32 v254, v252, v254\ns_add_u32 s{S_T1}, s{S_I4}, 1\nv_add_u32 v253, s{S_T1}, v253\nv_and_b32 v253, 3, v253')
        a(f'v_mul_u32_u24 v252, 1152, v253\nv_lshl_add_u32 v{vG3}, v254, 4, v252')
        a(f'v_mul_u32_u24 v253, 70, v253\nv_add_u32 v253, v253, v254\nv_mul_u32_u24 v253, 12, v253\nv_add_u32 v{vK3}, {self.A_KVB}, v253')
        a(f's_lshr_b32 s{S_T0}, s{S_CH}, 2\ns_lshl_b32 s{S_T0}, s{S_T0}, 3\ns_add_u32 s{S_T0}, s{S_T0}, s{S_G}')
        a(f's_mul_i32 s{S_S2}, s{S_T0}, {4*1152}\ns_add_u32 s{S_S2}, s{S_S2}, {WS_S2}\ns_lshl_b32 s{S_X2}, s{S_T0}, 7\ns_add_u32 s{S_X2}, s{S_X2}, {WS_X2}')

    def g2_early(self):
        a = self.a
        vG1, vG2, vS2, vK1, vG3, vK3 = 204, 207, 200, 201, 202, 203
        S_S2, S_X2 = 86, 87
        Lx = a.uniq('L_x2')
        a(f's_cmp_lg_u32 s{S_W}, 1\ns_cbranch_scc1 {Lx}')
        a(f's_mul_i32 s{S_T0}, s{S_I4}, 1152\ns_add_u32 s{S_T0}, s{S_T0}, s{S_S2}\nv_lshlrev_b32 v252, 7, v0\ns_mov_b64 exec, 0x1ff')
        a(f'buffer_load_dword v255, v252, s[{SRDW}:{SRDW+3}], s{S_T0} offen sc1')
        a(f's_xor_b32 s{S_T0}, s{S_TAG}, s{S_XCC}\nv_mov_b32 v253, s{S_T0}\ns_lshl_b32 s{S_T0}, s{S_I4}, 2\ns_add_u32 s{S_T0}, s{S_T0}, s{S_X2}\ns_mov_b64 exec, 1')
        a(f'buffer_store_dword v253, v252, s[{SRDW}:{SRDW+3}], s{S_T0} offen sc1\ns_mov_b64 exec, -1')
        a.label(Lx)

    def g2_run(self):
        a = self.a
        vG1, vG2, vS2, vK1, vG3, vK3 = 204, 207, 200, 201, 202, 203
        S_S2, S_X2 = 86, 87
        D = lambda m: 24 + 4 * m
        ACC = lambda h: 48 + 6 * h
        OUT = 68
        UP = lambda m: (ACC(0), 72, 78, 84, ACC(1))[m]
        S_PEND = S_CNT
        top, ok = a.uniq('L_gp'), a.uniq('L_gok')
        a(f'v_lshlrev_b32 v250, 2, v0\ns_mov_b64 exec, 15\nbuffer_load_dword v251, v250, s[{SRDW}:{SRDW+3}], s{S_X2} offen sc1\ns_mov_b64 exec, -1')
        for k in range(3):
            a(f'v_mov_b64 {vr(ACC(1)+2*k, 2)}, 0')
        a(f's_mov_b32 s{S_SPIN}, 0\ns_mov_b32 s{S_T3}, 0xffff0000\ns_mov_b32 s{S_PEND}, 31\nv_mov_b32 v{OUT+3}, s{S_TAG}')
        if int(self.o.get('bo', 0)):
            a(f's_sleep {int(self.o["bo"])}')
        a.label(top)
        for m in range(5):
            a(f's_add_u32 s{S_T0}, s{S_KVG}, {4*4480*(m % 4)}\ns_bitcmp1_b32 s{S_PEND}, {m}\ns_cselect_b32 s{S_T0}, s{S_T0}, {OOB:#x}')
            if m == 4:
                a('s_mov_b32 exec_hi, 0')
            a(f'buffer_load_dwordx4 {vr(D(m), 4)}, v{vG1 if m < 4 else vG2}, s[{SRDW}:{SRDW+3}], s{S_T0} offen {self.o.get("gx", "sc1")}')
        a('s_mov_b64 exec, -1')
        for m in range(5):
            sk = a.uniq('L_gs')
            if m == 4:
                a('s_mov_b32 exec_hi, 0')
            a(f's_waitcnt vmcnt({4-m})\nv_cmp_ne_u32 vcc, s{S_TAG}, v{D(m)+3}\ns_cbranch_vccnz {sk}\ns_bitset0_b32 s{S_PEND}, {m}')
            u = UP(m)
            for k in range(3):
                a(f'v_lshlrev_b32 v{u+2*k}, 16, v{D(m)+k}\nv_and_b32 v{u+2*k+1}, s{S_T3}, v{D(m)+k}')
            a.label(sk)
        a('s_mov_b64 exec, -1')
        if self.o.get('gst'):
            a(f's_min_u32 s88, s{S_SPIN}, 14')
            self.stamp((88, 20))
            a(f's_add_u32 s88, s88, 40\ns_mov_b32 m0, s88\nv_writelane_b32 v{self.sreg}, s{S_PEND}, m0')
        a(f's_cmp_eq_u32 s{S_PEND}, 0\ns_cbranch_scc1 {ok}')
        if int(self.o.get('bor', 0)):
            a(f's_sleep {int(self.o["bor"])}')
        self.spin_check(top, ok)
        a.label(ok)
        self.stamp(12)
        for k in range(3):
            a(f'v_pk_add_f32 {vr(UP(0)+2*k, 2)}, {vr(UP(0)+2*k, 2)}, {vr(UP(1)+2*k, 2)}\nv_pk_add_f32 {vr(UP(2)+2*k, 2)}, {vr(UP(2)+2*k, 2)}, {vr(UP(3)+2*k, 2)}')
        for k in range(3):
            a(f'v_pk_add_f32 {vr(UP(0)+2*k, 2)}, {vr(UP(0)+2*k, 2)}, {vr(UP(2)+2*k, 2)}')
        for sh in (2, 4, 8):
            for k in range(6):
                a(f'v_add_f32_dpp v{ACC(1)+k}, v{ACC(1)+k}, v{ACC(1)+k} row_ror:{sh} row_mask:0xf bank_mask:0xf')
        for k in range(6):
            a(f'v_mov_b32 v{D(0)+k}, v{ACC(0)+k}')
        for k in range(6):
            a(f'v_permlane32_swap_b32 v{ACC(0)+k}, v{D(0)+k}')
        for k in range(6):
            a(f'v_add_f32 v{ACC(0)+k}, v{ACC(0)+k}, v{D(0)+k}')
        for k in range(12):
            a(f'v_mov_b32 v{D(0)+k}, v{ACC(0)+k}')
        for k in range(12):
            a(f'v_permlane16_swap_b32 v{ACC(0)+k}, v{D(0)+k}')
        for k in range(12):
            a(f'v_add_f32 v{ACC(0)+k}, v{ACC(0)+k}, v{D(0)+k}')
        for k in range(3):
            a(f'v_cvt_pk_bf16_f32 v{OUT+k}, v{ACC(1)+2*k}, v{ACC(1)+2*k+1}')
        xt, xc, xo = a.uniq('L_x2p'), a.uniq('L_x2c'), a.uniq('L_x2o')
        a(f's_mov_b64 exec, 15\ns_mov_b32 s{S_SPIN}, 0\ns_branch {xc}')
        a.label(xt)
        a(f'buffer_load_dword v251, v250, s[{SRDW}:{SRDW+3}], s{S_X2} offen sc1\ns_waitcnt vmcnt(0)')
        a.label(xc)
        a(f'v_xor_b32 v251, s{S_TAG}, v251\nv_cmp_le_u32 vcc, 16, v251\ns_cbranch_vccz {xo}')
        self.spin_check(xt, xo)
        a.label(xo)
        a(f'v_cmp_ne_u32 vcc, s{S_XCC}, v251\ns_mov_b64 exec, 0xffff')
        for k in range(3):
            a(f'v_cvt_pk_bf16_f32 v{OUT+k}, v{ACC(0)+2*k}, v{ACC(0)+2*k+1}')
        sl, go = a.uniq('L_s2s'), a.uniq('L_s2g')
        a(f's_mul_i32 s{S_T0}, s{S_I4}, 1152\ns_add_u32 s{S_T0}, s{S_T0}, s{S_S2}\ns_mov_b64 exec, 0x3ffff')
        a(f's_cbranch_vccnz {sl}' if self.o['fast'] else f's_branch {sl}')
        a(f'buffer_store_dwordx4 {vr(OUT, 4)}, v{vS2}, s[{SRDW}:{SRDW+3}], s{S_T0} offen\ns_branch {go}')
        a.label(sl)
        a(f'buffer_store_dwordx4 {vr(OUT, 4)}, v{vS2}, s[{SRDW}:{SRDW+3}], s{S_T0} offen sc1')
        a.label(go)
        for k in range(3):
            a(f'ds_write_b32 v{vK1}, v{OUT+k} offset:{4*k}')
        top, ok = a.uniq('L_g2'), a.uniq('L_g2ok')
        a(f's_cmp_eq_u32 s{S_W}, 3\ns_cselect_b32 exec_lo, 0x3ffff, -1\ns_cselect_b32 exec_hi, 0, -1\ns_mov_b32 s{S_SPIN}, 0')
        a.label(top)
        a(f'buffer_load_dwordx4 {vr(D(0), 4)}, v{vG3}, s[{SRDW}:{SRDW+3}], s{S_S2} offen sc1\ns_waitcnt vmcnt(0)')
        a(f'v_cmp_ne_u32 vcc, s{S_TAG}, v{D(0)+3}\ns_cbranch_vccz {ok}')
        self.spin_check(top, ok)
        a.label(ok)
        for k in range(3):
            a(f'ds_write_b32 v{vK3}, v{D(0)+k} offset:{4*k}')
        a('s_mov_b64 exec, -1\ns_waitcnt lgkmcnt(0)')

    def slot_warm(self, nlines, wave):
        if not self.o.get('sw', True):
            return
        a = self.a
        L = a.uniq('L_sw')
        a(f's_cmp_lg_u32 s{S_W}, {wave}\ns_cbranch_scc1 {L}\nv_lshlrev_b32 v252, 7, v0')
        self.execmask((1 << nlines) - 1)
        a(f'buffer_load_dword v255, v252, s[{SRDW}:{SRDW+3}], s{S_KVO} offen\ns_mov_b64 exec, -1')
        a.label(L)

    def lds_signal(self, k, vt):
        a = self.a
        a(f'v_mov_b32 v{vt}, {self.A_CNT+4*k}\nv_mov_b32 v{vt+1}, 1\ns_mov_b64 exec, 1\nds_add_u32 v{vt}, v{vt+1}\ns_mov_b64 exec, -1')

    def lds_wait(self, k, vt, n=4):
        a = self.a
        top, ok = a.uniq('L_lw'), a.uniq('L_lwok')
        a(f'v_mov_b32 v{vt}, {self.A_CNT+4*k}\ns_mov_b32 s{S_SPIN}, 0')
        a.label(top)
        a(f'ds_read_b32 v{vt+1}, v{vt}\ns_waitcnt lgkmcnt(0)\nv_readfirstlane_b32 s{S_T4}, v{vt+1}\ns_cmp_ge_u32 s{S_T4}, {n}\ns_cbranch_scc1 {ok}')
        a(f's_add_u32 s{S_SPIN}, s{S_SPIN}, 1\ns_cmp_lt_u32 s{S_SPIN}, {SPIN*8}\ns_cbranch_scc1 {top}')
        a.label(ok)

    def a_phi(self, acc, j, dst):
        a = self.a
        T, VC = 240, 4
        for rb in range(2):
            A, t = acc(j, rb), T + 4 * rb
            for h in range(2):
                a(f'v_pk_fma_f32 {vr(t+2*h, 2)}, {vr(A+2*h, 2)}, {vr(VC, 2)}, {vr(VC, 2)} op_sel:[0,0,1] op_sel_hi:[1,0,1]')
        for rb in range(2):
            A, t = acc(j, rb), T + 4 * rb
            for r in range(4):
                a(f'v_exp_f32_e64 v{t+r}, v{t+r} clamp\nv_max_f32 v{A+r}, v{A+r}, v{VC+2}')
        for rb in range(2):
            A, t = acc(j, rb), T + 4 * rb
            for h in range(2):
                a(f'v_pk_add_f32 {vr(A+2*h, 2)}, {vr(A+2*h, 2)}, {vr(t+2*h, 2)}')
        for rb in range(2):
            A = acc(j, rb)
            for h in range(2):
                a(f'v_cvt_pk_bf16_f32 v{dst(rb, h)}, v{A+2*h}, v{A+2*h+1}')

    def wo_rounds(self, VP, n0, n1):
        if n1 <= n0:
            return
        a = self.a
        Lw = a.uniq('L_wo')
        a(f's_mov_b32 s{S_CNT}, {n0}')
        a.label(Lw)
        a(f's_add_u32 s{S_T3}, s{S_CNT}, s{S_I4}\ns_cmp_ge_u32 s{S_T3}, 5\ns_cselect_b32 s{S_T0}, 5, 0\ns_sub_u32 s{S_T3}, s{S_T3}, s{S_T0}')
        a(f's_lshl_b32 s{S_T3}, s{S_T3}, 2\ns_add_u32 s{S_T3}, s{S_T3}, s{S_W}')
        a(f's_mul_i32 s{S_T0}, s{S_T3}, {32*1280}\ns_mul_i32 s{S_T1}, s{S_T3}, 5120')
        for n in range(5):
            a(f's_add_u32 m0, s{S_T1}, {self.A_WO+1024*n}\nbuffer_load_dwordx4 v{VP+n}, s[{SRD1}:{SRD1+3}], s{S_T0} offen lds')
        a(f's_add_u32 s{S_CNT}, s{S_CNT}, 1\ns_cmp_lt_u32 s{S_CNT}, {n1}\ns_cbranch_scc1 {Lw}')

    def smem_touch(self, n):
        a = self.a
        for i in range(n):
            a(f's_load_dwordx2 s[{96+2*(i & 1)}:{97+2*(i & 1)}], s[94:95], {128*i+60}')
        a(f's_add_u32 s94, s94, {128*n}\ns_addc_u32 s95, s95, 0')

    def loader_loop(self, issue, per, sm=0, smn=9):
        a = self.a
        Lp = a.uniq('L_ld')
        a(f's_mov_b32 s{S_CNT}, 1')
        a.label(Lp)
        issue()
        if sm:
            Ls = a.uniq('L_nsm')
            a(f's_cmp_gt_u32 s{S_CNT}, {smn}\ns_cbranch_scc1 {Ls}')
            self.smem_touch(sm)
            a.label(Ls)
        a(f's_add_u32 s{S_CNT}, s{S_CNT}, 1')
        self.stamp((S_CNT, 10))
        a(f's_waitcnt vmcnt({per})')
        self.stamp((S_CNT, 25))
        a('s_barrier')
        self.stamp((S_CNT, 40))
        a(f's_cmp_lt_u32 s{S_CNT}, 10\ns_cbranch_scc1 {Lp}')

    def a_loader(self):
        a = self.a
        acc = lambda j, rb: 8 + 4 * (2 * j + rb)
        VC, WR, VX, VW, VP, XS = 4, 48, 80, 84, 89, 96
        slot = lambda c: self.A_R0 + self.A_SLOT * ((c + 1) % 3)
        a.label('L_AL')
        self.x_offsets(VX, False)
        self.start_chunk(S_KC)
        a(f's_lshl_b32 s{S_M+4}, s{S_W}, 12\ns_mul_i32 s{S_M+5}, s{S_W}, 5120\ns_lshr_b32 s{S_T0}, s{S_W}, 1\ns_add_u32 s{S_M+6}, s{S_KC}, s{S_T0}')
        a(f's_lshl_b32 s{S_T0}, s{S_T0}, 5\ns_and_b32 s{S_T1}, s{S_W}, 1\ns_lshl_b32 s{S_T1}, s{S_T1}, 2')
        a(f's_add_u32 s{S_T0}, s{S_T0}, s{S_T1}\ns_mul_i32 s{S_T0}, s{S_T0}, 3840\ns_mul_i32 s{S_T1}, s{S_G}, 160\ns_add_u32 s{S_T5}, s{S_T0}, s{S_T1}\ns_add_u32 s{S_T5}, s{S_T5}, 1280')
        a(f's_movk_i32 s{S_M}, 3840\ns_movk_i32 s{S_T4}, 1120')

        def woff(n):
            a(f'v_add_u32 v250, {64*n}, v0\nv_mul_u32_u24 v251, 3277, v250\nv_lshrrev_b32 v251, 16, v251')
            a('v_mul_u32_u24 v252, 20, v251\nv_sub_u32 v252, v250, v252\nv_lshrrev_b32 v253, 1, v251\nv_and_b32 v253, 2, v253\nv_xor_b32 v252, v252, v253')
            a('v_mul_u32_u24 v253, 26, v252\nv_lshrrev_b32 v253, 8, v253')
            a('v_and_b32 v250, -4, v251\nv_add_u32 v251, v251, v250')
            a(f'v_lshlrev_b32 v252, 4, v252\nv_mad_u32_u24 v252, v253, s{S_T4}, v252\nv_mad_u32_u24 v252, v251, s{S_M}, v252')
            a(f'v_add_u32 v{VW+n}, s{S_T5}, v252')

        def issue(c):
            a(f's_lshl_b32 s{S_T0}, s{S_KC}, 7\ns_mul_i32 s{S_T1}, s{S_KC}, 245760')
            if c == 0:
                woff(0)
                woff(1)
                a('s_waitcnt lgkmcnt(0)')
                self.srd(SRD0, P_AX, 2048 * 1280)
                self.srd(SRD1, P_WQKV, 640 * 3840)
                self.stamp(1)
            for n in range(4):
                a(f's_add_u32 m0, s{S_M+4}, {slot(c)+1024*n}\nbuffer_load_dwordx4 v{VX+n}, s[{SRD0}:{SRD0+3}], s{S_T0} offen lds')
            for n in range(5):
                if c == 0 and n >= 2:
                    woff(n)
                a(f's_add_u32 m0, s{S_M+5}, {slot(c)+16384+1024*n}\nbuffer_load_dwordx4 v{VW+n}, s[{SRD1}:{SRD1+3}], s{S_T1} offen lds')
            self.next_kc()
        issue(0)
        self.load_epoch()
        self.srd(SRDW, P_WS, WS_SIZE)
        issue(1)
        a('v_and_b32 v250, 15, v0\nv_lshrrev_b32 v251, 4, v0\nv_lshrrev_b32 v252, 1, v250\nv_xor_b32 v252, v252, v251')
        a(f's_add_u32 s{S_T0}, s{S_M+4}, {slot(0)}\nv_lshlrev_b32 v252, 4, v252\nv_lshl_add_u32 v252, v250, 7, v252\nv_add_u32 v1, s{S_T0}, v252\nv_xor_b32 v2, 64, v1')
        a('v_lshrrev_b32 v252, 2, v0\nv_mul_u32_u24 v252, 160, v252\nv_and_b32 v253, 3, v0\nv_lshl_add_u32 v3, v253, 3, v252')
        a(f's_mul_i32 s{S_T0}, s{S_G}, 160\ns_and_b32 s{S_T1}, s{S_W}, 1\ns_mul_i32 s{S_T1}, s{S_T1}, {32*3840}\ns_add_u32 s{S_T0}, s{S_T0}, s{S_T1}')
        for n in range(5):
            a(f'v_add_u32 v250, {64*n}, v0')
            self.div10(251, 252, 250)
            a('v_bfe_u32 v253, v251, 2, 2\nv_lshlrev_b32 v253, 3, v253\nv_and_b32 v250, 3, v251\nv_add_u32 v253, v253, v250\nv_lshrrev_b32 v251, 4, v251\nv_lshl_add_u32 v253, v251, 2, v253')
            a(f'v_mul_u32_u24 v253, 3840, v253\nv_lshl_add_u32 v253, v252, 4, v253\nv_add_u32 v{VP+n}, s{S_T0}, v253')
        a(f'v_mov_b32 v{VC}, {f2u(LOG2E):#x}\nv_mov_b32 v{VC+1}, {f2u(-1e-6*LOG2E):#x}\nv_mov_b32 v{VC+2}, {f2u(1e-6):#x}')
        for r in range(40):
            a(f'v_mov_b32 v{8+r}, v{VC+2}')
        a(f's_lshl_b32 s{S_BASE}, s{S_CH}, 2\ns_add_u32 s{S_BASE}, s{S_BASE}, s{S_W}\ns_mul_i32 s{S_BASE}, s{S_BASE}, 40960\ns_add_u32 s{S_BASE}, s{S_BASE}, {WS_O}')

        def wq_round(r):
            o = [f's_xor_b32 s{S_T1}, s{S_M+7}, {r}' if r < 4 else f's_mov_b32 s{S_T1}, 4',
                 f's_lshl_b32 s{S_T0}, s{S_T1}, 1', f's_add_u32 s{S_T0}, s{S_T0}, s{S_M+6}', f's_cmp_ge_u32 s{S_T0}, 10', f's_cselect_b32 s{S_T2}, 10, 0',
                 f's_sub_u32 s{S_T0}, s{S_T0}, s{S_T2}', f's_mul_i32 s{S_T0}, s{S_T0}, 245760',
                 f's_mul_i32 s{S_T1}, s{S_T1}, 20480', f's_add_u32 s{S_T1}, s{S_T1}, s{S_M+5}']
            for n in range(5):
                o += [f's_add_u32 m0, s{S_T1}, {1024*n}', 's_nop 0', f'buffer_load_dwordx4 v{VP+n}, s[{SRD1}:{SRD1+3}], s{S_T0} offen lds']
            return o
        a(f's_cmp_ge_u32 s{S_M+6}, 10\ns_cselect_b32 s{S_T0}, 10, 0\ns_sub_u32 s{S_M+6}, s{S_M+6}, s{S_T0}')
        a(f's_lshr_b32 s{S_M+7}, s{S_I4}, 1' if self.o.get('qswap', True) else f's_mov_b32 s{S_M+7}, 0')
        def prewarm(vd=95):
            if not self.o['prewarm']:
                return 0
            a(f's_mul_i32 s{S_T0}, s{S_G}, 5120\ns_add_u32 s{S_T0}, s{S_T0}, s{S_BASE}\nv_lshlrev_b32 v94, 7, v0')
            self.execmask((1 << 40) - 1)
            a(f'buffer_load_dword v{vd}, v94, s[{SRDW}:{SRDW+3}], s{S_T0} offen sc1\ns_mov_b64 exec, -1')
            return 1
        a('s_waitcnt vmcnt(9) lgkmcnt(0)')
        self.make_tag()
        a('s_barrier')
        for k in range(10):
            for ks in range(2):
                for rb in range(2):
                    a(f'ds_read_b128 {vr(XS+16*k+8*ks+4*rb, 4)}, v{1+ks} offset:{2048*rb}')
            if k == 9:
                break
            d = (slot(k + 1) - slot(k)) & 0xffffffff
            if k < 8:
                if self.o.get('pwa', 'g') == str(k):
                    prewarm()
                issue(k + 2)
                ny = 9
            else:
                ny = 5
                if self.o.get('pwa', 'g') == 'b8':
                    ny += prewarm()
                a('\n'.join(wq_round(0)))
            a(f'v_add_u32 v1, {d:#x}, v1\nv_add_u32 v2, {d:#x}, v2')
            a(f's_waitcnt vmcnt({ny}) lgkmcnt(0)\ns_barrier')
        self.stamp(2)
        a('s_waitcnt lgkmcnt(0)')
        self.lds_signal(0, 82)
        self.publish_xcc(80)
        qmode = self.o.get('qmode', 'a')
        a('\n'.join(wq_round(1) + wq_round(2) + (wq_round(3) if qmode != 'c' else [])))
        if qmode == 'a':
            self.lds_wait(0, 80, 8)
            a('\n'.join(wq_round(4)))
        a(f'v_add_u32 v2, 51200, v3\ns_waitcnt vmcnt({dict(a=15, b=10, c=5)[qmode]}) lgkmcnt(0)')
        self.lds_signal(1, 80)
        if qmode == 'b':
            self.lds_wait(0, 80, 8)
            self.lds_wait(1, 80)
            a('\n'.join(wq_round(4)))
        else:
            self.lds_wait(1, 80)
        self.stamp(3)

        def gemm(c0, c1, extra={}):
            q = Cnt(a, 'lgkmcnt', 15)
            LEAD = 6
            seq = [(kk, j) for kk in range(2 * c0, 2 * c1) for j in range(5)]

            def rd(m):
                if m < len(seq):
                    kk, j = seq[m]
                    for t in range(2):
                        a(f'ds_read_b64_tr_b16 {vr(WR+4*(m % 8)+2*t, 2)}, v{3 if kk < 10 else 2} offset:{5120*(kk % 10)+2560*t+32*j}')
                        q.issue(m)
            for m in range(LEAD):
                rd(m)
            start = len(a.lines)
            for m, (kk, j) in enumerate(seq):
                if m % 2 == 0:
                    q.wait(min(m + 1, len(seq) - 1))
                for rb in range(2):
                    d = vr(acc(j, rb), 4)
                    a(f'v_mfma_f32_16x16x32_bf16 {d}, {vr(WR+4*(m % 8), 4)}, {vr(XS+8*kk+4*rb, 4)}, {d}')
                rd(m + LEAD)
                for x in extra.get(m, []):
                    a(x)
            body = a.lines[start:]
            del a.lines[start:]
            a.lines += spread(body, tail=0)
        if qmode == 'c':
            self.lds_wait(0, 80, 8)
            r3 = wq_round(3) + wq_round(4)
            gemm(0, 4, {0: r3[:9], 2: r3[9:12], 3: r3[12:15], 4: r3[15:18], 5: r3[18:21], 6: r3[21:24], 8: r3[24:33],
                        10: r3[33:36], 11: r3[36:39], 12: r3[39:42], 13: r3[42:45], 14: r3[45:48]})
        else:
            gemm(0, 4)
        a('s_waitcnt vmcnt(5)')
        self.lds_signal(2, 80)
        self.lds_wait(2, 80)
        if self.o.get('pwa', 'g') == 'm':
            prewarm()
        gemm(4, 8)
        a(f's_waitcnt vmcnt({1 if self.o.get("pwa") == "m" and self.o["prewarm"] else 0})')
        self.lds_signal(3, 80)
        self.lds_wait(3, 80)
        gemm(8, 10)
        self.lds_signal(4, 80)
        self.stamp(4)
        if self.o.get('pwa', 'g') == 'g':
            prewarm(120)
        self.srd(SRD1, P_WO, 640 * 1280)
        self.period_offsets(VP)
        self.lds_wait(4, 80)
        self.wo_rounds(VP, 0, self.o['na1'])
        self.xcc_issue(250)
        self.stamp(13)
        vKR, vZR, vWO, vL16, vOUT = 207, 208, 209, 213, 214
        PQ = lambda rb, p: 48 + 12 * rb + 4 * p
        for j in range(5):
            self.a_phi(acc, j, lambda rb, h: PQ(rb, j // 2) + 2 * (j & 1) + h)
        for rb in range(2):
            a(f'v_mov_b64 {vr(PQ(rb, 2)+2, 2)}, 0')
        OP = 72
        if self.o.get('pwa') == 'm':
            a(f's_waitcnt vmcnt({5*self.o["na1"]+2})')
        for r in range(0, 48, 2):
            a(f'v_mov_b64 {vr(OP+r, 2)}, 0')
        DEN = lambda rb: 8 + 4 * rb
        NUM = lambda j, rb: 128 + 4 * (2 * j + rb)
        for rb in range(2):
            for r in range(4):
                a(f'v_mov_b32 v{DEN(rb)+r}, v{VC+2}')
        a('v_and_b32 v246, 15, v0\nv_lshrrev_b32 v247, 4, v0')
        a(f'v_lshlrev_b32 v247, 3, v247\nv_add_u32 v247, {self.A_KVB}, v247\nv_mul_u32_u24 v253, 40, v246\nv_add_u32 v{vKR}, v247, v253')
        a(f'v_and_b32 v253, 3, v246\nv_mul_u32_u24 v253, 800, v253\nv_add_u32 v{vZR}, v247, v253')
        a(f'v_add_u32 v{vWO}, {self.A_WO}, v3\nv_lshlrev_b32 v{vL16}, 4, v0')
        self.out_prepare(vOUT, 0)
        a(f's_mov_b64 s[{S_M}:{S_M+1}], 0xffff\ns_mov_b32 s{S_M+2}, -1\ns_mov_b32 s{S_M+3}, 0\ns_mov_b32 s{S_M+4}, -1\ns_mov_b32 s{S_M+5}, 0xffff')
        a(f's_mul_i32 s{S_T2}, s{S_G}, 5120\ns_add_u32 s{S_T2}, s{S_T2}, s{S_BASE}')
        self.stamp(5)
        a('s_barrier')
        self.stamp(10)
        ops = {}
        oplist = [(0, 0), (1, 0), (1, 1), (2, 0), (2, 1), (3, 1), (3, 2), (4, 1), (4, 2), ('z', 0), ('z', 1), ('z', 2)]
        oplist = oplist[9:] + oplist[:9]
        for n, (j, p) in enumerate(oplist):
            ops[(j, p)] = OP + 4 * n
            for t in range(2):
                b = 2 * p + t
                if j == 'z':
                    if b < 5:
                        self.execmask(sum(1 << (16*g+i) for g in range(4) for i in range(16) if (i & 3) == head(16*b+4*g)))
                        a(f'ds_read_b64 {vr(OP+4*n+2*t, 2)}, v{vZR} offset:{800+32*b}')
                elif (j, b) in pieces:
                    self.execmask(kvmask(j, b))
                    a(f'ds_read_b64 {vr(OP+4*n+2*t, 2)}, v{vKR} offset:{640*j+32*b}')
        a('s_mov_b64 exec, -1')
        a('s_waitcnt lgkmcnt(13)')
        for p in range(3):
            for rb in range(2):
                d = vr(DEN(rb), 4)
                a(f'v_mfma_f32_16x16x32_bf16 {d}, {vr(ops[("z", p)], 4)}, {vr(PQ(rb, p), 4)}, {d}')
        a('s_waitcnt lgkmcnt(0)')
        for j in range(5):
            ps = [p for (jj, p) in oplist if jj == j]
            for k, p in enumerate(ps):
                for rb in range(2):
                    d = vr(NUM(j, rb), 4)
                    a(f'v_mfma_f32_16x16x32_bf16 {d}, {vr(ops[(j, p)], 4)}, {vr(PQ(rb, p), 4)}, ' + ('0' if k == 0 else d))
        RC = lambda rb, j: 16 + 6 * rb + j
        for rb in range(2):
            for r in range(4):
                a(f'v_rcp_f32 v{DEN(rb)+r}, v{DEN(rb)+r}')
        for rb in range(2):
            a(f'v_mov_b32 v{RC(rb, 0)}, v{DEN(rb)}\nv_mov_b32 v{RC(rb, 4)}, v{DEN(rb)+3}')
            for j in range(1, 4):
                a(f'v_cndmask_b32 v{RC(rb, j)}, v{DEN(rb)+j}, v{DEN(rb)+j-1}, s[{S_M+2*(j-1)}:{S_M+2*(j-1)+1}]')
        OF = 28
        ofreg = lambda j, rb: OF + (4 * (2 * (j // 2) + rb) + 2 * (j & 1) if j < 4 else 16 + 2 * rb)
        for j in range(5):
            for rb in range(2):
                N = NUM(j, rb)
                rc = RC(rb, j)
                sel = 'op_sel:[0,1] op_sel_hi:[1,1]' if rc & 1 else 'op_sel:[0,0] op_sel_hi:[1,0]'
                for h in range(2):
                    a(f'v_pk_mul_f32 {vr(N+2*h, 2)}, {vr(N+2*h, 2)}, {vr(rc & ~1, 2)} {sel}')
            for rb in range(2):
                N = NUM(j, rb)
                for h in range(2):
                    a(f'v_cvt_pk_bf16_f32 v{ofreg(j, rb)+h}, v{N+2*h}, v{N+2*h+1}')
            if j in (1, 3):
                for rb in range(2):
                    f = 2 * (j // 2) + rb
                    a(f'buffer_store_dwordx4 {vr(OF+4*f, 4)}, v{vL16}, s[{SRDW}:{SRDW+3}], s{S_T2} offen offset:{1024*f} {self.ix}')
            if j == 4:
                a(f's_add_u32 s{S_T2}, s{S_T2}, 4096\nbuffer_store_dwordx4 {vr(OF+16, 4)}, v{vL16}, s[{SRDW}:{SRDW+3}], s{S_T2} offen {self.ix}')
        self.stamp(6)
        for u in range(8):
            a(f's_xor_b32 s{S_T0}, s{S_G}, {u}\ns_mul_i32 s{4+u}, s{S_T0}, 5120\ns_add_u32 s{4+u}, s{4+u}, s{S_BASE}')
            a(f's_mul_i32 s{S_T0}, s{S_T0}, 12800\nv_add_u32 v{8+u}, s{S_T0}, v{vWO}')
        a(f'v_add_u32 v1, 4096, v{vL16}')
        self.out_soffsets()
        self.xcc_eval(250)
        lab = self.hop2(250)
        a('s_mov_b64 exec, -1')
        acc2 = lambda j, rb: 52 + 4 * (2 * j + rb)
        WR2 = 132
        q = Cnt(a, 'lgkmcnt', 15)
        vq = Cnt(a, 'vmcnt', 63)
        LEAD = 7
        pool = list(range(116, 132, 4)) + list(range(172, 204, 4)) + list(range(216, 244, 4)) + list(range(16, 28, 4)) + list(range(28, 44, 4))
        pool += pool[:2]
        areg = {(0, f): OF + 4 * f for f in range(5)}
        loads = []
        steps = []
        for p in range(4):
            ua, ub = 2 * p, 2 * p + 1
            for u in (ua, ub):
                for h in range(2):
                    steps.append((((u, 2 * h), (u, 2 * h + 1)), ((u, 2 * h), (u, 2 * h + 1))))
                    if u:
                        for f in (2 * h, 2 * h + 1):
                            areg[(u, f)] = pool.pop(0)
                            loads.append((u, f))
            steps.append((((ua, 4), (ub, 4)), ((ua, 4), (ub, 4))))
            if p == 0:
                areg[(1, 4)] = 48
                loads.append((1, 4))
            else:
                areg[(ua, 4)], areg[(ub, 4)] = 92 + 8 * (p - 1), 96 + 8 * (p - 1)
                loads += [(ua, 4), (ub, 4)]
        tail = self.o.get('tail', True)
        seq = [(ks, j) for ks in range(15) for j in range(5)]
        seq += [(ks, j) for j in range(5) for ks in range(15, 20)] if tail else [(ks, j) for ks in range(15, 20) for j in range(5)]

        def rd_w(m):
            if m >= len(seq):
                return
            ks, j = seq[m]
            for t in range(2):
                u, blk = steps[ks][1][t]
                a(f'ds_read_b64_tr_b16 {vr(WR2+4*(m % 10)+2*t, 2)}, v{8+u} offset:{2560*blk+32*j}')
                q.issue(m)

        def ld_o():
            if loads:
                u, f = loads.pop(0)
                a(f'buffer_load_dwordx4 {vr(areg[(u, f)], 4)}, v{1 if f == 4 else vL16}, s[{SRDW}:{SRDW+3}], s{4+u} offen offset:{1024*(f & 3)} sc1')
                vq.issue((u, f))
        self.stamp(11)
        a('s_barrier')
        self.stamp(12)
        for m in range(LEAD):
            rd_w(m)
        swapped = set()
        pend = []
        for (m0, m1) in ((0, 5), (5, 100)):
            start = len(a.lines)
            for m in range(m0, m1):
                ks, j = seq[m]
                fr = steps[ks][0]
                for f in fr:
                    if f[0]:
                        vq.wait(f)
                if m + 2 < 100 and seq[m + 2][0] % 5 == 4 and seq[m + 2][0] not in swapped:
                    k4 = seq[m + 2][0]
                    swapped.add(k4)
                    vq.wait(steps[k4][0][1])
                    r = areg[steps[k4][0][0]]
                    a(f'v_swap_b32 v{r+2}, v{r+4}\nv_swap_b32 v{r+3}, v{r+5}')
                if m % 2 == 0 or m == m0:
                    q.wait(min(m + 1 - (m & 1), 99))
                for rb in range(2):
                    d = vr(acc2(j, rb), 4)
                    a(f'v_mfma_f32_16x16x32_bf16 {d}, {vr(areg[fr[rb]], 4)}, {vr(WR2+4*(m % 10), 4)}, ' + ('0' if ks == 0 else d))
                rd_w(m + LEAD)
                if m0 and m % 2 == 1:
                    ld_o()
                if m == 36 and self.o.get('wos', False) and not self.o.get('two'):
                    a('s_barrier')
                if tail and m >= 75:
                    if m >= 82 or (m - 75) % 5 >= 2:
                        for _ in range(3 if len(pend) > 2 else 2):
                            if pend and (m - 75) % 5 >= 2:
                                a(pend.pop(0))
                    if (m - 75) % 5 == 4:
                        pend += self.out_block(acc2, vOUT, j)
            body = a.lines[start:]
            del a.lines[start:]
            a.lines += spread(body, tail=0)
            if m0 == 0:
                self.hop2_wait(250, lab)
                self.stamp(7)
                for _ in range(4):
                    ld_o()
        assert not loads
        self.stamp(8)
        if tail:
            a('\n'.join(pend))
        else:
            self.out_stores(acc2, vOUT)
        if self.o['stamps'] or self.o.get('probe'):
            self.stamp(14)
            a('s_waitcnt vmcnt(0)')
        self.epoch_update(0)
        self.end_write_back()
        self.finish()

    def a_compute(self):
        a = self.a
        acc = lambda j, rb: 8 + 4 * (2 * j + rb)
        XF, WR = 128, 144
        vXA, vWA = 1, 8
        VC = 4
        a.label('L_AC')
        R1 = self.A_R0 + self.A_SLOT
        a('v_and_b32 v250, 15, v0\nv_lshrrev_b32 v251, 4, v0\nv_lshrrev_b32 v252, 1, v250\nv_xor_b32 v252, v252, v251')
        a(f's_lshl_b32 s{S_T0}, s{S_W}, 12\ns_add_u32 s{S_T0}, s{S_T0}, {R1}\nv_lshlrev_b32 v252, 4, v252\nv_lshl_add_u32 v252, v250, 7, v252\nv_add_u32 v{vXA}, s{S_T0}, v252')
        a(f'v_xor_b32 v{vXA+1}, 64, v{vXA}')
        a('v_lshrrev_b32 v252, 2, v0\nv_mul_u32_u24 v252, 320, v252\nv_and_b32 v253, 3, v0\nv_lshl_add_u32 v252, v253, 3, v252')
        a(f'v_add_u32 v252, {R1+16384}, v252\nv_and_b32 v253, 1, v251\nv_lshlrev_b32 v253, 5, v253\nv_add_u32 v{vWA}, v252, v253\nv_sub_u32 v{vWA+1}, v252, v253')
        a(f'v_mov_b32 v{VC}, {f2u(LOG2E):#x}\nv_mov_b32 v{VC+1}, {f2u(-1e-6*LOG2E):#x}\nv_mov_b32 v{VC+2}, {f2u(1e-6):#x}')
        for j in range(5, 15):
            for rb in range(2):
                for r in range(4):
                    a(f'v_mov_b32 v{acc(j, rb)+r}, ' + (f'v{VC+2}' if j < 10 else '0'))
        a(f'v_lshlrev_b32 v252, 2, v0\nv_add_u32 v252, {self.A_CNT}, v252\nv_mov_b32 v253, 0\nds_write_b32 v252, v253')
        ZB, vWA0, VP, vPOS = 216, 184, 10, 16
        zmask = 0x01f001f001f001f0
        groups = [[(0, 0)], [(1, 1)], [(2, 2)], [(1, 2), (3, 2)], [(3, 3)], [(0, 1), (4, 3)], [(2, 1), (2, 3)], [(4, 4)], [(1, 0), (3, 4), 'z']]
        mregs = {}
        a(f's_mul_i32 s{S_T0}, s{S_W}, 6720\ns_add_u32 s{S_T0}, s{S_T0}, {self.A_PART}\nv_lshlrev_b32 v252, 4, v251\nv_add_u32 v252, s{S_T0}, v252')
        a(f'v_mul_u32_u24 v253, 80, v250\nv_add_u32 v205, v252, v253')
        a(f'v_add_u32 v254, -4, v250\nv_lshlrev_b32 v253, 2, v254\nv_add_u32 v253, v253, v251\nv_mul_u32_u24 v253, 52, v253\nv_lshrrev_b32 v253, 8, v253')
        a(f'v_mul_u32_u24 v253, 1600, v253\nv_lshl_add_u32 v253, v254, 6, v253\nv_add_u32 v253, 1600, v253\nv_add_u32 v206, v252, v253')
        for n, grp in enumerate(groups):
            a(f'v_lshlrev_b32 v{vWA0+n}, 4, v0\nv_add_u32 v{vWA0+n}, {self.A_KVB}, v{vWA0+n}')
            for k, p in enumerate(grp):
                m = zmask if p == 'z' else kvmask(*p)
                if k:
                    mregs[p] = (94, 96, 98, 100, S_M + 6)[len(mregs)]
                    a(f's_mov_b32 s{mregs[p]}, {m & 0xffffffff:#x}\ns_mov_b32 s{mregs[p]+1}, {m >> 32:#x}')
                self.execmask(m)
                if p == 'z':
                    a(f'v_mov_b32 v{vWA0+n}, v206')
                else:
                    a(f'v_add_u32 v{vWA0+n}, {1280*p[0]+64*p[1]}, v205')
                a('s_mov_b64 exec, -1')
        a('v_mov_b32 v253, 0x3f803f80')
        for b in range(5):
            a(f'v_cmp_eq_u32 vcc, {b+4}, v250\nv_cndmask_b32 v{ZB+4*b}, 0, v253, vcc')
            for r in range(1, 4):
                a(f'v_mov_b32 v{ZB+4*b+r}, v{ZB+4*b}')
        for h, code in enumerate((f's_lshl_b32 s{S_T0}, s{S_W}, 6', f's_mul_i32 s{S_T0}, s{S_W}, 6\ns_add_u32 s{S_T0}, s{S_T0}, 256')):
            vp = vPOS + 3 * h
            a(code + f'\nv_add_u32 v{vp}, s{S_T0}, v0\nv_mul_u32_u24 v{vp+1}, 24, v{vp}\nv_add_u32 v{vp+1}, {self.A_PART}, v{vp+1}')
            a(f'v_mul_u32_u24 v{vp+2}, 12, v{vp}\nv_add_u32 v{vp+2}, {self.A_KVB}, v{vp+2}\nv_lshlrev_b32 v{vp}, 4, v{vp}')
        a(f's_mul_i32 s{S_KVG}, s{S_G}, {16*4480}\ns_add_u32 s{S_KVG}, s{S_KVG}, {WS_KVP}\ns_mul_i32 s{S_KVO}, s{S_CH}, 4480\ns_add_u32 s{S_KVO}, s{S_KVO}, s{S_KVG}')
        self.g2_setup()
        self.period_offsets(VP)
        a('s_waitcnt lgkmcnt(0)')
        self.load_epoch()
        self.srd(SRDW, P_WS, WS_SIZE)
        self.srd(SRD1, P_WO, 640 * 1280)
        self.tlb_touch(WS_O, 40960, [P_WO])
        a(f's_cmp_lg_u32 s{S_W}, 0\ns_cbranch_scc1 L_ac_nopf')
        self.code_prefetch('L_AL', 'L_BL')
        a.label('L_ac_nopf')
        a('s_waitcnt lgkmcnt(0)')
        self.make_tag()
        self.g2_early()
        self.slot_warm(35, 2)

        def wread(n, reg):
            ks, j = divmod(n, 10)
            for t in range(2):
                a(f'ds_read_b64_tr_b16 {vr(reg+2*t, 2)}, v{vWA+(j & 1)} offset:{(32*ks+16*t)*320+32*j}')
            return 2
        self.mainloop(10, lambda j, rb: acc(5 + j, rb), XF, WR, vXA, [vWA, vWA + 1], wread, lambda j: False, self.A_SLOT, 3, True, slot0=1)
        self.stamp(2)
        self.lds_signal(0, 250)
        PK, VF, ZD = 128, 148, 196
        res = {'z': ZD}
        done, written, vdone = set(), set(), set()

        def flush_writes():
            for n, grp in enumerate(groups):
                if n in written or not all(p in done for p in grp):
                    continue
                written.add(n)
                d = res[grp[0]]
                for p in grp[1:]:
                    for r in range(4):
                        a(f'v_cndmask_b32 v{d+r}, v{d+r}, v{res[p]+r}, s[{mregs[p]}:{mregs[p]+1}]')
                a(f'ds_write_b128 v{vWA0+n}, {vr(d, 4)}')
        for b in range(5):
            self.a_phi(acc, 5 + b, lambda rb, h: PK + 4 * b + 2 * rb + h)
            for (j, bb) in pieces:
                if bb == b and j not in vdone:
                    vdone.add(j)
                    for rb in range(2):
                        for h in range(2):
                            A = acc(10 + j, rb)
                            a(f'v_cvt_pk_bf16_f32 v{VF+4*j+2*rb+h}, v{A+2*h}, v{A+2*h+1}')
            flush_writes()
            free = [acc(5 + b, 0), acc(5 + b, 1), acc(10, 0) + 4 * (b - 1)]
            mine = [p for p in pieces if p[1] == b]
            mine.sort(key=lambda p: p[0] != p[1])
            for p in mine:
                res[p] = free.pop(0)
                a(f'v_mfma_f32_16x16x32_bf16 {vr(res[p], 4)}, {vr(PK+4*b, 4)}, {vr(VF+4*p[0], 4)}, 0')
                done.add(p)
            a(f'v_mfma_f32_16x16x32_bf16 {vr(ZD, 4)}, {vr(PK+4*b, 4)}, {vr(ZB+4*b, 4)}, ' + ('0' if b == 0 else vr(ZD, 4)))
        done.add('z')
        flush_writes()
        assert len(written) == len(groups)
        a('s_waitcnt lgkmcnt(0)')
        self.lds_signal(5, 250)
        self.lds_wait(5, 250)
        self.stamp(3)
        T = lambda h: 128 + 28 * h
        for h in range(2):
            for w in range(4):
                for k in range(3):
                    a(f'ds_read_b64 {vr(T(h)+6*w+2*k, 2)}, v{vPOS+3*h+1} offset:{6720*w+8*k}')
            a(f'v_mov_b32 v{T(h)+27}, s{S_TAG}')
        for h in range(2):
            a(f's_waitcnt lgkmcnt({12-12*h})')
            for k in range(3):
                a(f'v_pk_add_f32 {vr(T(h)+2*k, 2)}, {vr(T(h)+2*k, 2)}, {vr(T(h)+6+2*k, 2)}')
                a(f'v_pk_add_f32 {vr(T(h)+12+2*k, 2)}, {vr(T(h)+12+2*k, 2)}, {vr(T(h)+18+2*k, 2)}')
            for k in range(3):
                a(f'v_pk_add_f32 {vr(T(h)+2*k, 2)}, {vr(T(h)+2*k, 2)}, {vr(T(h)+12+2*k, 2)}')
            for k in range(3):
                a(f'v_cvt_pk_bf16_f32 v{T(h)+24+k}, v{T(h)+2*k}, v{T(h)+2*k+1}')
            if h:
                a('s_mov_b64 exec, 0x3f')
            a(f'buffer_store_dwordx4 {vr(T(h)+24, 4)}, v{vPOS+3*h}, s[{SRDW}:{SRDW+3}], s{S_KVO} offen sc1')
        a('s_mov_b64 exec, -1')
        self.stamp(4)
        self.g2_run()
        self.stamp(5)
        a('s_barrier')
        self.wo_rounds(VP, self.o['na1'], 5)
        a('s_waitcnt vmcnt(0)')
        self.stamp(6)
        a('s_barrier')
        self.finish()

    def kv_offsets(self):
        self.a(f's_mul_i32 s{S_KVG}, s{S_G}, {16*4480}\ns_add_u32 s{S_KVG}, s{S_KVG}, {WS_KVP}\ns_mul_i32 s{S_KVO}, s{S_CH}, 4480\ns_add_u32 s{S_KVO}, s{S_KVO}, s{S_KVG}')

    def pub_setup(self, vps):
        a = self.a
        for vp, code in zip(vps, (f's_lshl_b32 s{S_T0}, s{S_W}, 6', f's_mul_i32 s{S_T0}, s{S_W}, 6\ns_add_u32 s{S_T0}, s{S_T0}, 256')):
            a(code + f'\nv_add_u32 v{vp}, s{S_T0}, v0\nv_mul_u32_u24 v{vp+1}, 24, v{vp}\nv_add_u32 v{vp+1}, {self.A_PART}, v{vp+1}\nv_lshlrev_b32 v{vp}, 4, v{vp}')
        self.kv_offsets()

    def pub_run(self, vps, T0):
        a = self.a
        T = lambda h: T0 + 28 * h
        for h in range(2):
            for w in range(4):
                for k in range(3):
                    a(f'ds_read_b64 {vr(T(h)+6*w+2*k, 2)}, v{vps[h]+1} offset:{6720*w+8*k}')
            a(f'v_mov_b32 v{T(h)+27}, s{S_TAG}')
        for h in range(2):
            a(f's_waitcnt lgkmcnt({12-12*h})')
            for k in range(3):
                a(f'v_pk_add_f32 {vr(T(h)+2*k, 2)}, {vr(T(h)+2*k, 2)}, {vr(T(h)+6+2*k, 2)}')
                a(f'v_pk_add_f32 {vr(T(h)+12+2*k, 2)}, {vr(T(h)+12+2*k, 2)}, {vr(T(h)+18+2*k, 2)}')
            for k in range(3):
                a(f'v_pk_add_f32 {vr(T(h)+2*k, 2)}, {vr(T(h)+2*k, 2)}, {vr(T(h)+12+2*k, 2)}')
            for k in range(3):
                a(f'v_cvt_pk_bf16_f32 v{T(h)+24+k}, v{T(h)+2*k}, v{T(h)+2*k+1}')
            if h:
                a('s_mov_b64 exec, 0x3f')
            a(f'buffer_store_dwordx4 {vr(T(h)+24, 4)}, v{vps[h]}, s[{SRDW}:{SRDW+3}], s{S_KVO} offen {self.o.get("px", "sc1")}')
        a('s_mov_b64 exec, -1')

    def a1_loader(self):
        a = self.a
        SLOT = 47104
        VX, VW, VP = 1, 5, 13
        lf = self.o.get('lf', True)
        a.label('L_AL')
        self.x_offsets(24, False)
        self.start_chunk(S_KC)
        S_XO, S_WA, S_WB, S_E3, S_E7 = 94, 98, 99, 100, 101
        a(f's_lshr_b32 s{S_T2}, s{S_G}, 1\ns_lshr_b32 s{S_T3}, s{S_I4}, 1' if lf else f's_mov_b32 s{S_T2}, 0\ns_mov_b32 s{S_T3}, 0')
        a(f's_mov_b32 s{S_M+3}, s{S_T2}')

        def xoff(n):
            a(f's_add_u32 s{S_T0}, s{S_M+3}, {n}\ns_and_b32 s{S_T0}, s{S_T0}, 3\ns_lshl_b32 s{S_XO+n}, s{S_W}, 2\ns_add_u32 s{S_XO+n}, s{S_XO+n}, s{S_T0}\ns_lshl_b32 s{S_XO+n}, s{S_XO+n}, 10')
            a(f's_bitcmp1_b32 s{S_T0}, 0\ns_cselect_b64 vcc, -1, 0\nv_cndmask_b32 v{VX+n}, v24, v25, vcc')
            a(f's_lshr_b32 s{S_T0}, s{S_T0}, 1\ns_mul_i32 s{S_T0}, s{S_T0}, {16*1280}\nv_add_u32 v{VX+n}, s{S_T0}, v{VX+n}')
        for n in range(1 if lf else 4):
            xoff(n)
        a(f's_mul_i32 s{S_M+5}, s{S_W}, 7680\ns_add_u32 s{S_M+5}, s{S_M+5}, 16384\ns_mov_b32 s{S_SLOT}, 0')
        a(f's_lshl_b32 s{S_M+4}, s{S_T3}, 8\ns_lshl_b32 s{S_T0}, s{S_T3}, 12\ns_add_u32 s{S_WA}, s{S_M+5}, s{S_T0}\ns_xor_b32 s{S_T0}, s{S_T0}, 4096\ns_add_u32 s{S_WB}, s{S_M+5}, s{S_T0}')
        a(f's_cmp_eq_u32 s{S_T3}, 0\ns_cselect_b32 s{S_E3}, -1, 0\ns_cselect_b32 s{S_E7}, 0, -1')
        a(f's_lshr_b32 s{S_T0}, s{S_W}, 1\ns_lshl_b32 s{S_T0}, s{S_T0}, 5\ns_and_b32 s{S_T1}, s{S_W}, 1\ns_lshl_b32 s{S_T1}, s{S_T1}, 2')
        a(f's_add_u32 s{S_T0}, s{S_T0}, s{S_T1}\ns_mul_i32 s{S_T0}, s{S_T0}, 3840\ns_mul_i32 s{S_T1}, s{S_G}, 160\ns_add_u32 s{S_T5}, s{S_T0}, s{S_T1}')
        a(f's_movk_i32 s{S_M}, 3840\ns_movk_i32 s{S_T4}, 1120')

        def woff(n):
            a(f'v_add_u32 v250, {64*n}, v0\nv_xor_b32 v250, s{S_M+4}, v250\nv_mul_u32_u24 v251, 2185, v250\nv_lshrrev_b32 v251, 16, v251')
            a('v_mul_u32_u24 v252, 30, v251\nv_sub_u32 v252, v250, v252')
            a('v_mul_u32_u24 v253, 26, v252\nv_lshrrev_b32 v253, 8, v253')
            a('v_and_b32 v250, -4, v251\nv_add_u32 v251, v251, v250')
            a(f'v_lshlrev_b32 v252, 4, v252\nv_mad_u32_u24 v252, v253, s{S_T4}, v252\nv_mad_u32_u24 v252, v251, s{S_M}, v252')
            a(f'v_add_u32 v{VW+n}, s{S_T5}, v252')

        def xld(n):
            a(f's_add_u32 m0, s{S_T2}, s{S_XO+n}\nbuffer_load_dwordx4 v{VX+n}, s[{SRD0}:{SRD0+3}], s{S_M+1} offen lds')

        def wld(n, first):
            if first and n >= 1:
                woff(n)
            if n & 3 == 3:
                a(f's_mov_b32 exec_hi, s{S_E3 if n == 3 else S_E7}')
            a(f's_add_u32 m0, s{S_T3 if n < 4 else S_M+2}, {1024*(n & 3)}\nbuffer_load_dwordx4 v{VW+n}, s[{SRD1}:{SRD1+3}], s{S_KVB} offen lds')
            if n & 3 == 3:
                a('s_mov_b64 exec, -1')
        H1 = 5 if lf else 6

        def issue1(first=False):
            a(f's_lshl_b32 s{S_M+1}, s{S_KC}, 7\ns_mul_i32 s{S_KVB}, s{S_KC}, 245760')
            a(f's_mov_b32 s{S_T2}, s{S_SLOT}\ns_add_u32 s{S_T3}, s{S_SLOT}, s{S_WA}\ns_add_u32 s{S_M+2}, s{S_SLOT}, s{S_WB}')
            if first:
                woff(0)
                a('s_waitcnt lgkmcnt(0)')
                self.srd(SRD0, P_AX, 2048 * 1280)
                self.srd(SRD1, P_WQKV, 640 * 3840)
                self.stamp(1)
            for n in range(1 if lf else 4):
                xld(n)
            for n in range(4 if lf else 2):
                wld(n, first)
            self.next_kc()
            a(f's_add_u32 s{S_SLOT}, s{S_SLOT}, {SLOT}\ns_cmp_eq_u32 s{S_SLOT}, {3*SLOT}\ns_cselect_b32 s{S_SLOT}, 0, s{S_SLOT}')

        def issue2(first=False):
            for n in range(4 if lf else 2, 8):
                wld(n, first)
            if lf:
                for n in range(1, 4):
                    if first:
                        xoff(n)
                    xld(n)
        issue1(True)
        issue2(True)
        self.load_epoch()
        self.srd(SRD2, P_WO, 640 * 1280)
        self.srd(SRDW, P_WS, WS_SIZE)
        self.period_offsets(VP)
        self.kv_offsets()
        g2 = self.o.get('g2', True)
        if g2:
            a('v_and_b32 v250, 15, v0\nv_lshrrev_b32 v251, 4, v0')
            self.g2_setup()
        else:
            self.g1_setup(204)
        issue1()
        a(f's_waitcnt vmcnt({H1}) lgkmcnt(0)')
        self.make_tag()
        self.stamp(7)
        a('s_barrier')
        if g2:
            self.g2_early()
        self.slot_warm(35, 2)
        issue2()
        Lp = a.uniq('L_ld')
        a(f's_mov_b32 s{S_CNT}, 2')
        a.label(Lp)
        issue1()
        a(f's_add_u32 s{S_CNT}, s{S_CNT}, 1')
        self.stamp((S_CNT, 10))
        a(f's_waitcnt vmcnt({H1})')
        self.stamp((S_CNT, 25))
        a('s_barrier')
        self.stamp((S_CNT, 40))
        issue2()
        a(f's_cmp_lt_u32 s{S_CNT}, 10\ns_cbranch_scc1 {Lp}')
        ny = 1
        a(f's_lshl_b32 s{S_T0}, s{S_I4}, 2\ns_add_u32 s{S_T0}, s{S_T0}, s{S_W}\ns_mul_i32 s{S_T0}, s{S_T0}, {8*1280}\ns_mul_i32 s{S_T1}, s{S_G}, 160\ns_add_u32 s{S_T0}, s{S_T0}, s{S_T1}')
        a('v_lshrrev_b32 v250, 1, v0\nv_mul_u32_u24 v250, 1280, v250\nv_and_b32 v251, 1, v0\nv_lshl_add_u32 v250, v251, 7, v250\ns_mov_b64 exec, 0xffff')
        a(f'buffer_load_dword v254, v250, s[{SRD2}:{SRD2+3}], s{S_T0} offen\ns_mov_b64 exec, -1')
        if self.o['prewarm']:
            a(f's_lshl_b32 s{S_T0}, s{S_CH}, 2\ns_add_u32 s{S_T0}, s{S_T0}, s{S_W}\ns_lshl_b32 s{S_T0}, s{S_T0}, 3\ns_add_u32 s{S_T0}, s{S_T0}, s{S_G}')
            a(f's_mul_i32 s{S_T0}, s{S_T0}, 5120\ns_add_u32 s{S_T0}, s{S_T0}, {WS_O}\nv_lshlrev_b32 v250, 7, v0')
            self.execmask((1 << 40) - 1)
            a(f'buffer_load_dword v255, v250, s[{SRDW}:{SRDW+3}], s{S_T0} offen sc1\ns_mov_b64 exec, -1')
            ny += 1

        def wo_quad():
            a(f's_lshl_b32 s{S_T2}, s{S_T2}, 2\ns_add_u32 s{S_T2}, s{S_T2}, s{S_W}')
            a(f's_mul_i32 s{S_T0}, s{S_T2}, {32*1280}\ns_mul_i32 s{S_T1}, s{S_T2}, 5120\ns_add_u32 s{S_T1}, s{S_T1}, {self.A_WO}')
            for n in range(5):
                a(f's_add_u32 m0, s{S_T1}, {1024*n}\nbuffer_load_dwordx4 v{VP+n}, s[{SRD2}:{SRD2+3}], s{S_T0} offen lds')

        def wo_rounds(n0, n1):
            if n1 <= n0:
                return
            Lw = a.uniq('L_wo')
            a(f's_mov_b32 s{S_CNT}, {n0}')
            a.label(Lw)
            a(f's_add_u32 s{S_T2}, s{S_CNT}, s{S_I4}\ns_and_b32 s{S_T2}, s{S_T2}, 3\ns_add_u32 s{S_T2}, s{S_T2}, 1\ns_cmp_eq_u32 s{S_CNT}, 4\ns_cselect_b32 s{S_T2}, 0, s{S_T2}')
            wo_quad()
            a(f's_add_u32 s{S_CNT}, s{S_CNT}, 1\ns_cmp_lt_u32 s{S_CNT}, {n1}\ns_cbranch_scc1 {Lw}')
        a(f's_waitcnt vmcnt({ny})\ns_barrier')
        self.publish_xcc()
        staged = self.o.get('wos', False)
        if staged:
            Lw = a.uniq('L_wo')
            a(f's_cmp_eq_u32 s{S_I4}, 3\ns_cselect_b32 s{S_KC}, 0, s{S_I4}\ns_lshr_b32 s{S_SLOT}, s{S_G}, 2\ns_add_u32 s{S_SLOT}, s{S_SLOT}, 1\ns_mov_b32 s{S_CNT}, 0')
            a.label(Lw)
            a(f's_add_u32 s{S_T2}, s{S_KC}, s{S_SLOT}')
            wo_quad()
            a(f's_add_u32 s{S_KC}, s{S_KC}, 1\ns_cmp_eq_u32 s{S_KC}, 3\ns_cselect_b32 s{S_KC}, 0, s{S_KC}')
            a(f's_add_u32 s{S_CNT}, s{S_CNT}, 1\ns_cmp_lt_u32 s{S_CNT}, 3\ns_cbranch_scc1 {Lw}')
        else:
            wo_rounds(0, self.o['na1'])
        self.stamp(2)
        a('s_barrier')
        self.stamp(3)
        if staged:
            a(f's_mov_b32 s{S_T2}, 0')
            wo_quad()
        if g2:
            self.g2_run()
        else:
            self.g1_run(204)
        self.stamp(5)
        a('s_barrier')
        if staged:
            if self.o.get('wol', 'p') == 'p':
                a('s_barrier')
            a(f's_cmp_ge_u32 s{S_G}, 4\ns_cselect_b32 s{S_T2}, 1, 4')
            wo_quad()
            if self.o.get('wol', 'p') != 'p':
                a('s_barrier')
            a('s_waitcnt vmcnt(0)')
            self.stamp(6)
            a('s_barrier')
        else:
            wo_rounds(self.o['na1'], 5)
            a('s_waitcnt vmcnt(0)')
            self.stamp(6)
            a('s_barrier')
        self.finish()

    def a1_compute(self):
        a = self.a
        acc = lambda j, rb: 8 + 4 * (2 * j + rb)
        XF, WR = 128, 144
        vXA, vWA = 1, 3
        VC = 4
        a.label('L_AC')
        a('v_and_b32 v250, 15, v0\nv_lshrrev_b32 v251, 4, v0\nv_lshrrev_b32 v252, 1, v250\nv_xor_b32 v252, v252, v251')
        a(f's_lshl_b32 s{S_T0}, s{S_W}, 12\nv_lshlrev_b32 v252, 4, v252\nv_lshl_add_u32 v252, v250, 7, v252\nv_add_u32 v{vXA}, s{S_T0}, v252')
        a(f'v_xor_b32 v{vXA+1}, 64, v{vXA}')
        a('v_lshrrev_b32 v252, 2, v0\nv_mul_u32_u24 v252, 480, v252\nv_and_b32 v253, 3, v0\nv_lshl_add_u32 v252, v253, 3, v252')
        a(f'v_add_u32 v{vWA}, 16384, v252')
        a(f'v_mov_b32 v{VC}, {f2u(LOG2E):#x}\nv_mov_b32 v{VC+1}, {f2u(-1e-6*LOG2E):#x}\nv_mov_b32 v{VC+2}, {f2u(1e-6):#x}')
        for j in range(15):
            for rb in range(2):
                for r in range(4):
                    a(f'v_mov_b32 v{acc(j, rb)+r}, ' + (f'v{VC+2}' if j < 10 else '0'))
        head = lambda x: x // 20
        vKR, vZR, vWO, vPOS, vL16, vOUT, ZB, vWA0 = 207, 208, 209, 210, 213, 214, 216, 184

        def kvmask(j, b):
            return sum(1 << (16*g+i) for i in range(16) for g in range(4) if head(16*j+i) == head(16*b+4*g))
        zmask = 0x01f001f001f001f0
        groups = [[(0, 0)], [(1, 1)], [(2, 2)], [(1, 2), (3, 2)], [(3, 3)], [(0, 1), (4, 3)], [(2, 1), (2, 3)], [(4, 4)], [(1, 0), (3, 4), 'z']]
        mregs = {}
        a(f's_mul_i32 s{S_T0}, s{S_W}, 6720\ns_add_u32 s{S_T0}, s{S_T0}, {self.A_PART}\nv_lshlrev_b32 v252, 4, v251\nv_add_u32 v252, s{S_T0}, v252')
        a(f'v_mul_u32_u24 v253, 80, v250\nv_add_u32 v205, v252, v253')
        a(f'v_add_u32 v254, -4, v250\nv_lshlrev_b32 v253, 2, v254\nv_add_u32 v253, v253, v251\nv_mul_u32_u24 v253, 52, v253\nv_lshrrev_b32 v253, 8, v253')
        a(f'v_mul_u32_u24 v253, 1600, v253\nv_lshl_add_u32 v253, v254, 6, v253\nv_add_u32 v253, 1600, v253\nv_add_u32 v206, v252, v253')
        for n, grp in enumerate(groups):
            a(f'v_lshlrev_b32 v{vWA0+n}, 4, v0\nv_add_u32 v{vWA0+n}, {self.A_KVB}, v{vWA0+n}')
            for k, p in enumerate(grp):
                m = zmask if p == 'z' else kvmask(*p)
                if k:
                    mregs[p] = (94, 96, 98, 100, S_M + 6)[len(mregs)]
                    a(f's_mov_b32 s{mregs[p]}, {m & 0xffffffff:#x}\ns_mov_b32 s{mregs[p]+1}, {m >> 32:#x}')
                self.execmask(m)
                if p == 'z':
                    a(f'v_mov_b32 v{vWA0+n}, v206')
                else:
                    a(f'v_add_u32 v{vWA0+n}, {1280*p[0]+64*p[1]}, v205')
                a('s_mov_b64 exec, -1')
        a(f'v_lshlrev_b32 v252, 3, v251\nv_add_u32 v252, {self.A_KVB}, v252\nv_mul_u32_u24 v253, 40, v250\nv_add_u32 v{vKR}, v252, v253')
        a(f'v_and_b32 v253, 3, v250\nv_mul_u32_u24 v253, 800, v253\nv_add_u32 v{vZR}, v252, v253')
        a('v_lshrrev_b32 v252, 2, v0\nv_mul_u32_u24 v252, 160, v252\nv_and_b32 v253, 3, v0\nv_lshl_add_u32 v252, v253, 3, v252')
        a(f'v_add_u32 v{vWO}, {self.A_WO}, v252\nv_lshlrev_b32 v{vL16}, 4, v0')
        a('v_mov_b32 v253, 0x3f803f80')
        for b in range(5):
            a(f'v_cmp_eq_u32 vcc, {b+4}, v250\nv_cndmask_b32 v{ZB+4*b}, 0, v253, vcc')
            for r in range(1, 4):
                a(f'v_mov_b32 v{ZB+4*b+r}, v{ZB+4*b}')
        self.pub_setup((vPOS, 200))
        a(f's_lshl_b32 s{S_BASE}, s{S_CH}, 2\ns_add_u32 s{S_BASE}, s{S_BASE}, s{S_W}\ns_mul_i32 s{S_BASE}, s{S_BASE}, 40960\ns_add_u32 s{S_BASE}, s{S_BASE}, {WS_O}')
        a('s_waitcnt lgkmcnt(0)')
        self.load_epoch()
        self.srd(SRDW, P_WS, WS_SIZE)
        self.out_prepare(vOUT, 0)
        a(f's_cmp_lg_u32 s{S_W}, 0\ns_cbranch_scc1 L_ac_nopf')
        self.code_prefetch('L_AL', 'L_BL')
        a.label('L_ac_nopf')
        a('s_waitcnt lgkmcnt(0)')
        self.make_tag()

        def wread(n, reg):
            ks, j = divmod(n, 15)
            for t in range(2):
                a(f'ds_read_b64_tr_b16 {vr(reg+2*t, 2)}, v{vWA} offset:{(32*ks+16*t)*480+32*j}')
            return 2
        self.mainloop(15, acc, XF, WR, vXA, [vWA], wread, lambda j: j < 5, 47104, 3, True)
        self.stamp(2)
        self.dump('a_acc', range(8, 128))
        if self.o.get('stg'):
            Ls = a.uniq('L_stg')
            for w_ in range(3):
                a(f's_cmp_le_u32 s{S_W}, {w_}\ns_cbranch_scc1 {Ls}\ns_nop {int(self.o["stg"])}')
            a.label(Ls)

        def phi(j, dst):
            T = 240
            for rb in range(2):
                A = acc(j, rb)
                t = T + 4 * rb
                for h in range(2):
                    a(f'v_pk_fma_f32 {vr(t+2*h, 2)}, {vr(A+2*h, 2)}, {vr(VC, 2)}, {vr(VC, 2)} op_sel:[0,0,1] op_sel_hi:[1,0,1]')
            for rb in range(2):
                A = acc(j, rb)
                t = T + 4 * rb
                for r in range(4):
                    a(f'v_exp_f32_e64 v{t+r}, v{t+r} clamp\nv_max_f32 v{A+r}, v{A+r}, v{VC+2}')
            for rb in range(2):
                A = acc(j, rb)
                t = T + 4 * rb
                for h in range(2):
                    a(f'v_pk_add_f32 {vr(A+2*h, 2)}, {vr(A+2*h, 2)}, {vr(t+2*h, 2)}')
            for rb in range(2):
                A = acc(j, rb)
                for h in range(2):
                    a(f'v_cvt_pk_bf16_f32 v{dst(rb, h)}, v{A+2*h}, v{A+2*h+1}')
        PK, VF, ZD = 128, 148, 196
        pieces = [(j, b) for b in range(5) for j in range(5) if kvmask(j, b)]
        assert len(pieces) == 13
        res = {'z': ZD}
        done = set()
        written = set()
        vdone = set()

        def flush_writes():
            for n, grp in enumerate(groups):
                if n in written or not all(p in done for p in grp):
                    continue
                written.add(n)
                d = res[grp[0]]
                for p in grp[1:]:
                    for r in range(4):
                        a(f'v_cndmask_b32 v{d+r}, v{d+r}, v{res[p]+r}, s[{mregs[p]}:{mregs[p]+1}]')
                a(f'ds_write_b128 v{vWA0+n}, {vr(d, 4)}')
        for b in range(5):
            phi(5 + b, lambda rb, h: PK + 4 * b + 2 * rb + h)
            for (j, bb) in pieces:
                if bb == b and j not in vdone:
                    vdone.add(j)
                    for rb in range(2):
                        for h in range(2):
                            A = acc(10 + j, rb)
                            a(f'v_cvt_pk_bf16_f32 v{VF+4*j+2*rb+h}, v{A+2*h}, v{A+2*h+1}')
            flush_writes()
            free = [acc(5 + b, 0), acc(5 + b, 1), acc(10, 0) + 4 * (b - 1)]
            mine = [p for p in pieces if p[1] == b]
            mine.sort(key=lambda p: p[0] != p[1])
            for p in mine:
                res[p] = free.pop(0)
                a(f'v_mfma_f32_16x16x32_bf16 {vr(res[p], 4)}, {vr(PK+4*b, 4)}, {vr(VF+4*p[0], 4)}, 0')
                done.add(p)
            a(f'v_mfma_f32_16x16x32_bf16 {vr(ZD, 4)}, {vr(PK+4*b, 4)}, {vr(ZB+4*b, 4)}, ' + ('0' if b == 0 else vr(ZD, 4)))
        done.add('z')
        flush_writes()
        assert len(written) == len(groups)
        a('s_waitcnt lgkmcnt(0)\ns_barrier')
        self.stamp(3)
        self.pub_run((vPOS, 200), 128)
        self.stamp(4)
        self.xcc_issue(250)
        PQ = lambda rb, p: 48 + 12 * rb + 4 * p
        for j in range(5):
            phi(j, lambda rb, h: PQ(rb, j // 2) + 2 * (j & 1) + h)
        for rb in range(2):
            a(f'v_mov_b32 v{PQ(rb, 2)+2}, 0\nv_mov_b32 v{PQ(rb, 2)+3}, 0')
        OP = 72
        for r in range(48):
            a(f'v_mov_b32 v{OP+r}, 0')
        DEN = lambda rb: 8 + 4 * rb
        NUM = lambda j, rb: 128 + 4 * (2 * j + rb)
        for rb in range(2):
            for r in range(4):
                a(f'v_mov_b32 v{DEN(rb)+r}, v{VC+2}')
        a(f's_mov_b64 s[{S_M}:{S_M+1}], 0xffff\ns_mov_b32 s{S_M+2}, -1\ns_mov_b32 s{S_M+3}, 0\ns_mov_b32 s{S_M+4}, -1\ns_mov_b32 s{S_M+5}, 0xffff')
        a(f's_mul_i32 s{S_T2}, s{S_G}, 5120\ns_add_u32 s{S_T2}, s{S_T2}, s{S_BASE}')
        self.stamp(5)
        a('s_barrier')
        self.stamp(10)
        ops = {}
        oplist = [(0, 0), (1, 0), (1, 1), (2, 0), (2, 1), (3, 1), (3, 2), (4, 1), (4, 2), ('z', 0), ('z', 1), ('z', 2)]
        oplist = oplist[9:] + oplist[:9]
        for n, (j, p) in enumerate(oplist):
            ops[(j, p)] = OP + 4 * n
            for t in range(2):
                b = 2 * p + t
                if j == 'z':
                    if b < 5:
                        self.execmask(sum(1 << (16*g+i) for g in range(4) for i in range(16) if (i & 3) == head(16*b+4*g)))
                        a(f'ds_read_b64 {vr(OP+4*n+2*t, 2)}, v{vZR} offset:{800+32*b}')
                elif (j, b) in pieces:
                    self.execmask(kvmask(j, b))
                    a(f'ds_read_b64 {vr(OP+4*n+2*t, 2)}, v{vKR} offset:{640*j+32*b}')
        a('s_mov_b64 exec, -1')
        a('s_waitcnt lgkmcnt(13)')
        for p in range(3):
            for rb in range(2):
                d = vr(DEN(rb), 4)
                a(f'v_mfma_f32_16x16x32_bf16 {d}, {vr(ops[("z", p)], 4)}, {vr(PQ(rb, p), 4)}, {d}')
        a('s_waitcnt lgkmcnt(0)')
        for j in range(5):
            ps = [p for (jj, p) in oplist if jj == j]
            for k, p in enumerate(ps):
                for rb in range(2):
                    d = vr(NUM(j, rb), 4)
                    a(f'v_mfma_f32_16x16x32_bf16 {d}, {vr(ops[(j, p)], 4)}, {vr(PQ(rb, p), 4)}, ' + ('0' if k == 0 else d))
        RC = lambda rb, j: 16 + 6 * rb + j
        for rb in range(2):
            for r in range(4):
                a(f'v_rcp_f32 v{DEN(rb)+r}, v{DEN(rb)+r}')
        for rb in range(2):
            a(f'v_mov_b32 v{RC(rb, 0)}, v{DEN(rb)}\nv_mov_b32 v{RC(rb, 4)}, v{DEN(rb)+3}')
            for j in range(1, 4):
                a(f'v_cndmask_b32 v{RC(rb, j)}, v{DEN(rb)+j}, v{DEN(rb)+j-1}, s[{S_M+2*(j-1)}:{S_M+2*(j-1)+1}]')
        OF = 28
        ofreg = lambda j, rb: OF + (4 * (2 * (j // 2) + rb) + 2 * (j & 1) if j < 4 else 16 + 2 * rb)
        for j in range(5):
            for rb in range(2):
                N = NUM(j, rb)
                rc = RC(rb, j)
                sel = 'op_sel:[0,1] op_sel_hi:[1,1]' if rc & 1 else 'op_sel:[0,0] op_sel_hi:[1,0]'
                for h in range(2):
                    a(f'v_pk_mul_f32 {vr(N+2*h, 2)}, {vr(N+2*h, 2)}, {vr(rc & ~1, 2)} {sel}')
            for rb in range(2):
                N = NUM(j, rb)
                for h in range(2):
                    a(f'v_cvt_pk_bf16_f32 v{ofreg(j, rb)+h}, v{N+2*h}, v{N+2*h+1}')
            if j in (1, 3):
                for rb in range(2):
                    f = 2 * (j // 2) + rb
                    a(f'buffer_store_dwordx4 {vr(OF+4*f, 4)}, v{vL16}, s[{SRDW}:{SRDW+3}], s{S_T2} offen offset:{1024*f} {self.ix}')
            if j == 4:
                a(f's_add_u32 s{S_T2}, s{S_T2}, 4096\nbuffer_store_dwordx4 {vr(OF+16, 4)}, v{vL16}, s[{SRDW}:{SRDW+3}], s{S_T2} offen {self.ix}')
        self.stamp(6)
        for u in range(8):
            a(f's_xor_b32 s{S_T0}, s{S_G}, {u}\ns_mul_i32 s{4+u}, s{S_T0}, 5120\ns_add_u32 s{4+u}, s{4+u}, s{S_BASE}')
            a(f's_mul_i32 s{S_T0}, s{S_T0}, 12800\nv_add_u32 v{8+u}, s{S_T0}, v{vWO}')
        a(f'v_add_u32 v1, 4096, v{vL16}')
        self.out_soffsets()
        self.xcc_eval(250)
        lab = self.hop2(250)
        a('s_mov_b64 exec, -1')
        acc2 = lambda j, rb: 52 + 4 * (2 * j + rb)
        WR2 = 132
        q = Cnt(a, 'lgkmcnt', 15)
        vq = Cnt(a, 'vmcnt', 63)
        LEAD = 7
        pool = list(range(116, 132, 4)) + list(range(172, 204, 4)) + list(range(216, 244, 4)) + list(range(16, 28, 4)) + list(range(28, 44, 4))
        pool += pool[:2]
        areg = {(0, f): OF + 4 * f for f in range(5)}
        loads = []
        steps = []
        for p in range(4):
            ua, ub = 2 * p, 2 * p + 1
            for u in (ua, ub):
                for h in range(2):
                    steps.append((((u, 2 * h), (u, 2 * h + 1)), ((u, 2 * h), (u, 2 * h + 1))))
                    if u:
                        for f in (2 * h, 2 * h + 1):
                            areg[(u, f)] = pool.pop(0)
                            loads.append((u, f))
            steps.append((((ua, 4), (ub, 4)), ((ua, 4), (ub, 4))))
            if p == 0:
                areg[(1, 4)] = 48
                loads.append((1, 4))
            else:
                areg[(ua, 4)], areg[(ub, 4)] = 92 + 8 * (p - 1), 96 + 8 * (p - 1)
                loads += [(ua, 4), (ub, 4)]
        tail = self.o.get('tail', True)
        seq = [(ks, j) for ks in range(15) for j in range(5)]
        seq += [(ks, j) for j in range(5) for ks in range(15, 20)] if tail else [(ks, j) for ks in range(15, 20) for j in range(5)]

        def rd_w(m):
            if m >= len(seq):
                return
            ks, j = seq[m]
            for t in range(2):
                u, blk = steps[ks][1][t]
                a(f'ds_read_b64_tr_b16 {vr(WR2+4*(m % 10)+2*t, 2)}, v{8+u} offset:{2560*blk+32*j}')
                q.issue(m)

        def ld_o():
            if loads:
                u, f = loads.pop(0)
                a(f'buffer_load_dwordx4 {vr(areg[(u, f)], 4)}, v{1 if f == 4 else vL16}, s[{SRDW}:{SRDW+3}], s{4+u} offen offset:{1024*(f & 3)} sc1')
                vq.issue((u, f))
        self.stamp(11)
        a('s_barrier')
        self.stamp(12)
        for m in range(LEAD):
            rd_w(m)
        swapped = set()
        pend = []
        for (m0, m1) in ((0, 5), (5, 100)):
            start = len(a.lines)
            for m in range(m0, m1):
                ks, j = seq[m]
                fr = steps[ks][0]
                for f in fr:
                    if f[0]:
                        vq.wait(f)
                if m + 2 < 100 and seq[m + 2][0] % 5 == 4 and seq[m + 2][0] not in swapped:
                    k4 = seq[m + 2][0]
                    swapped.add(k4)
                    vq.wait(steps[k4][0][1])
                    r = areg[steps[k4][0][0]]
                    a(f'v_swap_b32 v{r+2}, v{r+4}\nv_swap_b32 v{r+3}, v{r+5}')
                if m % 2 == 0 or m == m0:
                    q.wait(min(m + 1 - (m & 1), 99))
                for rb in range(2):
                    d = vr(acc2(j, rb), 4)
                    a(f'v_mfma_f32_16x16x32_bf16 {d}, {vr(areg[fr[rb]], 4)}, {vr(WR2+4*(m % 10), 4)}, ' + ('0' if ks == 0 else d))
                rd_w(m + LEAD)
                if m0 and m % 2 == 1:
                    ld_o()
                if m == 36 and self.o.get('wos', False) and not self.o.get('two'):
                    a('s_barrier')
                if tail and m >= 75:
                    if m >= 82 or (m - 75) % 5 >= 2:
                        for _ in range(3 if len(pend) > 2 else 2):
                            if pend and (m - 75) % 5 >= 2:
                                a(pend.pop(0))
                    if (m - 75) % 5 == 4:
                        pend += self.out_block(acc2, vOUT, j)
            body = a.lines[start:]
            del a.lines[start:]
            a.lines += spread(body, tail=0)
            if m0 == 0:
                self.hop2_wait(250, lab)
                self.stamp(7)
                for _ in range(4):
                    ld_o()
        assert not loads
        self.stamp(8)
        if tail:
            a('\n'.join(pend))
        else:
            self.out_stores(acc2, vOUT)
        if self.o['stamps'] or self.o.get('probe'):
            self.stamp(14)
            a('s_waitcnt vmcnt(0)')
        self.epoch_update(0)
        self.end_write_back()
        self.finish()

    B_SLOT = 36864
    B_RING = 16384
    B_G = 0
    B_PART1 = 10240
    B_PART2 = 13312
    B_XT = 20480

    def b_loader(self):
        a = self.a
        VX, VW, VP, VC = 1, 5, 13, 44
        a.label('L_BL')
        self.x_offsets(VX, True)
        self.start_chunk(S_KC)
        a(f's_mov_b32 s{S_M+6}, s{S_G}\ns_mov_b32 s{S_M+7}, 1')
        if self.o['bdir']:
            a(f's_bitcmp1_b32 s{S_I4}, 0\ns_cselect_b32 s{S_M+7}, -1, 1\ns_cselect_b32 s{S_T0}, 10, 0\ns_add_u32 s{S_M+6}, s{S_M+6}, s{S_T0}')
        a(f's_and_b32 s{S_T1}, s{S_W}, 1\ns_mul_i32 s{S_T0}, s{S_T1}, 40\ns_mul_i32 s{S_T2}, s{S_G}, 80\ns_add_u32 s{S_T0}, s{S_T0}, s{S_T2}\ns_mul_i32 s{S_T0}, s{S_T0}, 1280')
        a(f's_lshl_b32 s{S_T1}, s{S_T1}, 6')
        a('v_lshrrev_b32 v250, 4, v0\nv_and_b32 v251, 7, v0\nv_xor_b32 v250, v250, v251\nv_lshlrev_b32 v250, 4, v250')
        a(f'v_xor_b32 v250, s{S_T1}, v250\nv_xor_b32 v252, 64, v250')
        a(f'v_lshrrev_b32 v251, 3, v0\nv_mul_u32_u24 v251, 1280, v251\nv_add_u32 v251, s{S_T0}, v251')
        a('v_add_u32 v250, v250, v251\nv_add_u32 v252, v252, v251')
        a(f's_mul_i32 s{S_T2}, s{S_G}, {-16*1280 & 0xffffffff:#x}\ns_mul_i32 s{S_T3}, s{S_G}, {-64*1280 & 0xffffffff:#x}\ns_add_u32 s{S_T3}, s{S_T3}, {448*1280}')
        a(f's_bitcmp1_b32 s{S_W}, 0\ns_cselect_b32 s{S_T3}, s{S_T3}, s{S_T2}')
        for n in range(5):
            a(f'v_add_u32 v{VC+n}, {8*n*1280}, v{252 if n & 1 else 250}\nv_add_u32 v{VW+n}, s{S_T2 if n < 3 else S_T3}, v{VC+n}')
        a(f's_lshl_b32 s{S_M+4}, s{S_W}, 12\ns_mul_i32 s{S_M+5}, s{S_W}, 5120\ns_mov_b32 s{S_SLOT}, {self.B_RING}')
        a('s_waitcnt lgkmcnt(0)')
        self.srd(SRD0, P_BX, 2048 * 1280)
        a(f's_cmp_ge_u32 s{S_W}, 2')
        a(f's_cselect_b32 s{SRD1}, s{P_BIM}, s{P_BRE}\ns_cselect_b32 s{SRD1+1}, s{P_BIM+1}, s{P_BRE+1}\ns_mov_b32 s{SRD1+2}, 819200\ns_mov_b32 s{SRD1+3}, 0x20000')
        a(f's_cselect_b32 s{SRD2}, s{P_CIM}, s{P_CRE}\ns_cselect_b32 s{SRD2+1}, s{P_CIM+1}, s{P_CRE+1}\ns_mov_b32 s{SRD2+2}, 819200\ns_mov_b32 s{SRD2+3}, 0x20000')

        def issue():
            a(f's_lshl_b32 s{S_T0}, s{S_KC}, 7')
            a(f's_add_u32 s{S_T2}, s{S_SLOT}, s{S_M+4}\ns_add_u32 s{S_T3}, s{S_SLOT}, s{S_M+5}\ns_add_u32 s{S_T3}, s{S_T3}, 16384')
            for n in range(4):
                a(f's_add_u32 m0, s{S_T2}, {1024*n}\nbuffer_load_dwordx4 v{VX+n}, s[{SRD0}:{SRD0+3}], s{S_T0} offen lds')
            for n in range(5):
                a(f's_add_u32 m0, s{S_T3}, {1024*n}\nbuffer_load_dwordx4 v{VW+n}, s[{SRD1}:{SRD1+3}], s{S_T0} offen lds')
            self.next_kc()
            a(f's_add_u32 s{S_SLOT}, s{S_SLOT}, {self.B_SLOT}\ns_cmp_eq_u32 s{S_SLOT}, {self.B_RING+4*self.B_SLOT}\ns_cselect_b32 s{S_SLOT}, {self.B_RING}, s{S_SLOT}')
        self.stamp(1)
        if self.o['pp']:
            self.pp_x()
            if self.o['pp'] != 'x':
                self.dense_pf(SRD1, 100, f's_lshr_b32 s{S_T0}, s2, 3\ns_lshl_b32 s{S_T0}, s{S_T0}, 1\ns_and_b32 s{S_T1}, s{S_W}, 1\ns_add_u32 s{S_T0}, s{S_T0}, s{S_T1}\ns_mul_i32 s{S_T0}, s{S_T0}, 12800')
        issue()
        if self.o['pf']:
            self.pf_x()
            Lq = a.uniq('L_pfw')
            a(f's_lshr_b32 s{S_T0}, s{S_W}, 1\ns_and_b32 s{S_T1}, s{S_I4}, 1\ns_cmp_lg_u32 s{S_T0}, s{S_T1}\ns_cbranch_scc1 {Lq}')
            self.pf_chunk()
            a(f's_lshl_b32 s{S_T0}, s{S_T0}, 7\ns_and_b32 s{S_T1}, s{S_W}, 1\ns_mul_i32 s{S_T1}, s{S_T1}, 40\ns_mul_i32 s{S_T2}, s{S_G}, 80')
            a(f's_add_u32 s{S_T1}, s{S_T1}, s{S_T2}\ns_mul_i32 s{S_T1}, s{S_T1}, 1280\ns_add_u32 s{S_T0}, s{S_T0}, s{S_T1}\nv_mul_u32_u24 v246, 1280, v0')
            self.execmask((1 << 40) - 1)
            a(f'buffer_load_dword v245, v246, s[{SRD1}:{SRD1+3}], s{S_T0} offen\ns_mov_b64 exec, -1')
            a.label(Lq)
        self.load_epoch()
        self.srd(SRDW, P_WS, WS_SIZE)
        self.period_offsets(VP)
        a('v_and_b32 v20, 15, v0\nv_mul_u32_u24 v20, 48, v20\nv_and_b32 v21, 0x30, v0\nv_add_u32 v20, v20, v21\nv_lshlrev_b32 v21, 4, v0')
        a(f's_lshl_b32 s{S_KVO}, s{S_G}, 4\ns_add_u32 s{S_KVO}, s{S_KVO}, s{S_CH}\ns_mul_i32 s{S_KVO}, s{S_KVO}, 768\ns_add_u32 s{S_KVO}, s{S_KVO}, {WS_AGG}')
        self.slot_warm(6, 2)
        sm = int(self.o.get('smem', 0)) if self.o['prewarm'] else 0
        if sm:
            a(f's_lshl_b32 s{S_T0}, s{S_CH}, 2\ns_add_u32 s{S_T0}, s{S_T0}, s{S_W}\ns_mul_i32 s{S_T0}, s{S_T0}, 81920\ns_lshl_b32 s{S_T1}, s{S_G}, 13')
            a(f's_add_u32 s{S_T0}, s{S_T0}, s{S_T1}\ns_add_u32 s{S_T0}, s{S_T0}, {WS_H}\ns_add_u32 s94, s{P_WS}, s{S_T0}\ns_addc_u32 s95, s{P_WS+1}, 0')
            a('s_waitcnt lgkmcnt(0)')
            self.make_tag()
            self.smem_touch(64 - 9 * sm if sm < 7 else 1)
            self.loader_loop(issue, 9, sm)
        elif 'b' in self.o.get('mw', ''):
            a(f's_lshr_b32 s{S_T0}, s{S_CH}, 2\ns_lshl_b32 s{S_T0}, s{S_T0}, 5\ns_lshr_b32 s{S_T1}, s2, 3\ns_add_u32 s{S_T0}, s{S_T0}, s{S_T1}\ns_lshl_b32 s{S_T0}, s{S_T0}, 1')
            a(f's_and_b32 s{S_T1}, s{S_W}, 1\ns_add_u32 s{S_T0}, s{S_T0}, s{S_T1}\ns_mul_i32 s{S_T0}, s{S_T0}, {25*128}\ns_min_u32 s{S_T0}, s{S_T0}, {(6400-27)*128}')
            a(f's_add_u32 s94, s{SRD2}, s{S_T0}\ns_addc_u32 s95, s{SRD2+1}, 0')
            self.loader_loop(issue, 9, *((5, 5) if self.o.get('mw5', False) else (3, 9)))
            a('s_waitcnt lgkmcnt(0)')
            self.make_tag()
        else:
            self.loader_loop(issue, 9)
            a('s_waitcnt lgkmcnt(0)')
            self.make_tag()
        for m in range(4):
            a(f's_lshr_b32 s{S_T0}, s{S_TAG}, {8*m}\nv_mov_b32 v{40+m}, s{S_T0}')

        def c_chunks(n0, n1):
            if n1 <= n0:
                return
            Lc = a.uniq('L_bc')
            a(f's_mov_b32 s{S_CNT}, {n0}')
            a.label(Lc)
            a(f's_mul_i32 s{S_T0}, s{S_M+7}, s{S_CNT}\ns_add_u32 s{S_T0}, s{S_M+6}, s{S_T0}\ns_cmp_ge_u32 s{S_T0}, 10\ns_cselect_b32 s{S_T1}, 10, 0\ns_sub_u32 s{S_T0}, s{S_T0}, s{S_T1}\ns_lshl_b32 s{S_T0}, s{S_T0}, 7')
            a(f's_andn2_b32 s{S_T1}, 7, s{S_CNT}\ns_mul_i32 s{S_T1}, s{S_T1}, 20480\ns_add_u32 s{S_T1}, s{S_T1}, s{S_M+5}')
            for n in range(5):
                a(f's_add_u32 m0, s{S_T1}, {1024*n}\nbuffer_load_dwordx4 v{VC+n}, s[{SRD2}:{SRD2+3}], s{S_T0} offen lds')
            if n1 - n0 > 1:
                a(f's_add_u32 s{S_CNT}, s{S_CNT}, 1\ns_cmp_lt_u32 s{S_CNT}, {n1}\ns_cbranch_scc1 {Lc}')
        early = not self.o['prewarm'] or sm
        if sm:
            a(f's_lshl_b32 s{S_T0}, s{S_CH}, 2\ns_add_u32 s{S_T0}, s{S_T0}, s{S_W}\ns_mul_i32 s{S_T0}, s{S_T0}, 81920\ns_add_u32 s{S_T0}, s{S_T0}, {WS_H+65536}')
            a(f's_lshl_b32 s{S_T1}, s{S_G}, 11\ns_add_u32 s{S_T0}, s{S_T0}, s{S_T1}\nv_lshlrev_b32 v250, 7, v0\ns_mov_b64 exec, 0xffff')
            a(f'buffer_load_dword v255, v250, s[{SRDW}:{SRDW+3}], s{S_T0} offen sc1\ns_mov_b64 exec, -1')
            c_chunks(2, 3)
            ny = 6
        elif self.o['prewarm']:
            a(f's_lshl_b32 s{S_T0}, s{S_CH}, 2\ns_add_u32 s{S_T0}, s{S_T0}, s{S_W}\ns_mul_i32 s{S_T0}, s{S_T0}, 81920\ns_add_u32 s{S_T0}, s{S_T0}, {WS_H}')
            a(f's_lshl_b32 s{S_T1}, s{S_G}, 13\ns_add_u32 s{S_T1}, s{S_T0}, s{S_T1}\nv_lshlrev_b32 v250, 7, v0')
            a(f'buffer_load_dword v254, v250, s[{SRDW}:{SRDW+3}], s{S_T1} offen sc1\ns_lshl_b32 s{S_T1}, s{S_G}, 11\ns_add_u32 s{S_T0}, s{S_T0}, s{S_T1}\ns_add_u32 s{S_T0}, s{S_T0}, 65536\ns_mov_b64 exec, 0xffff')
            a(f'buffer_load_dword v255, v250, s[{SRDW}:{SRDW+3}], s{S_T0} offen sc1\ns_mov_b64 exec, -1')
            ny = 2
        else:
            c_chunks(2, 3)
            ny = 5
        a(f's_waitcnt vmcnt({ny})\ns_barrier')
        self.publish_xcc()
        if early:
            c_chunks(0, 2)
        self.stamp(2)
        a('s_barrier')
        self.stamp(3)
        Ln = a.uniq('L_bnp')
        a(f's_cmp_lg_u32 s{S_W}, 0\ns_cbranch_scc1 {Ln}')
        self.execmask((1 << 48) - 1)
        for w in range(4):
            a(f'ds_read_b128 {vr(24+4*w, 4)}, v20 offset:{self.B_PART1-self.B_G+768*w}')
        a(f's_movk_i32 s{S_T0}, 0xff\ns_waitcnt lgkmcnt(0)')
        for h in range(2):
            a(f'v_pk_add_f32 {vr(24+2*h, 2)}, {vr(24+2*h, 2)}, {vr(28+2*h, 2)}\nv_pk_add_f32 {vr(32+2*h, 2)}, {vr(32+2*h, 2)}, {vr(36+2*h, 2)}')
        for h in range(2):
            a(f'v_pk_add_f32 {vr(24+2*h, 2)}, {vr(24+2*h, 2)}, {vr(32+2*h, 2)}')
        for m in range(4):
            a(f'v_bfi_b32 v{24+m}, s{S_T0}, v{40+m}, v{24+m}')
        a(f'buffer_store_dwordx4 v[24:27], v21, s[{SRDW}:{SRDW+3}], s{S_KVO} offen sc1\ns_mov_b64 exec, -1')
        a.label(Ln)
        self.stamp(4)
        a(f's_lshl_b32 s{S_T0}, s{S_CH}, 2\ns_add_u32 s{S_T0}, s{S_T0}, s{S_W}\ns_mul_i32 s{S_T0}, s{S_T0}, {32*1280}')
        a(f's_add_u32 s{S_T1}, s{S_M+5}, {self.B_XT}')
        for n in range(5):
            a(f's_add_u32 m0, s{S_T1}, {1024*n}\nbuffer_load_dwordx4 v{VP+n}, s[{SRD0}:{SRD0+3}], s{S_T0} offen lds')
        n0 = 3 if early else 0
        n1 = n0 + self.o['nc1']
        c_chunks(n0, n1)
        a(f's_waitcnt vmcnt({5*(n1-n0)})\ns_barrier')
        self.stamp(5)
        n3 = min(6, n1 + self.o['nc2'])
        c_chunks(n1, n3)
        if self.o.get('bs', False):
            a('s_barrier')
            c_chunks(n3, 8)
            a(f's_waitcnt vmcnt({5*(8-n3)})')
            n3 = 8
        else:
            a('s_waitcnt vmcnt(0)')
        self.stamp(6)
        a('s_barrier')
        assert n3 >= 3
        if self.o.get('bq'):
            a('s_barrier')
        if not self.o.get('x_nolate'):
            c_chunks(n3, 8)
        a('s_waitcnt vmcnt(0)\ns_barrier')
        if not self.o.get('x_nolate'):
            c_chunks(8, 10)
        a('s_waitcnt vmcnt(0)\ns_barrier')
        self.write_back()
        self.finish()

    def b_compute(self):
        a = self.a
        acc = lambda jj, rb: 8 + 4 * (2 * jj + rb)
        XF, WR = 88, 104
        vXA, vWA = 1, 3
        PA, PC, PAB, PWH, PA4, PA8, PWG, PD, SEL = 144, 154, 164, 184, 194, 204, 214, 234, 240
        a.label('L_BC')
        a('v_and_b32 v250, 15, v0\nv_lshrrev_b32 v251, 4, v0\nv_lshrrev_b32 v252, 1, v250\nv_xor_b32 v252, v252, v251')
        a(f's_lshl_b32 s{S_T0}, s{S_W}, 12\ns_add_u32 s{S_T0}, s{S_T0}, {self.B_RING}\nv_lshlrev_b32 v252, 4, v252\nv_lshl_add_u32 v252, v250, 7, v252\nv_add_u32 v{vXA}, s{S_T0}, v252')
        a(f'v_xor_b32 v{vXA+1}, 64, v{vXA}\nv_add_u32 v{vWA}, {16384+self.B_RING}, v252\nv_xor_b32 v{vWA+1}, 64, v{vWA}')
        a(f's_mul_i32 s{S_T0}, s{S_G}, 160\nv_lshlrev_b32 v252, 1, v250\nv_add_u32 v5, s{S_T0}, v252')
        a(f's_lshl_b32 s{S_T0}, s{S_G}, 7\nv_add_u32 v6, s{S_T0}, v252\ns_lshl_b32 s{S_T0}, s{S_G}, 5\ns_add_u32 s{S_T0}, s{S_T0}, 1024\nv_add_u32 v7, s{S_T0}, v252')
        LAM = lambda j: 88 + 2 * j
        LDT = lambda j: 98 + j
        for j in range(5):
            a(f'v_mov_b64 {vr(LAM(j), 2)}, 0\nv_mov_b32 v{LDT(j)}, 0\nv_mov_b32 v{PD+j}, 0')
        a('s_waitcnt lgkmcnt(0)')
        for p, reg in ((P_LDT, LDT), (P_LRE, LAM), (P_LIM, lambda j: LAM(j) + 1), (P_DSK, lambda j: PD + j)):
            self.srd(SRD0, p, 1280)
            for j in range(5):
                if p == P_DSK:
                    a(f'buffer_load_short_d16_hi v{reg(j)}, v5, s[{SRD0}:{SRD0+3}], 0 offen offset:{32*j}')
                else:
                    a(f'buffer_load_short_d16_hi v{reg(j)}, v{6 if j < 4 else 7}, s[{SRD0}:{SRD0+3}], 0 offen offset:{32*j if j < 4 else 0}')
        self.load_epoch()
        self.srd(SRDW, P_WS, WS_SIZE)
        self.tlb_touch(WS_H, 81920, [P_CRE, P_CIM])
        a(f's_cmp_lg_u32 s{S_W}, 0\ns_cbranch_scc1 L_bc_nopf')
        self.code_prefetch('L_BL', 'L_END')
        a.label('L_bc_nopf')
        for r in range(80):
            a(f'v_mov_b32 v{8+r}, 0')
        vPR, vPW, vL16, vGW, vGR, vXT, vGA, vOUT = 5, 6, 7, 239, 224, 249, 226, 140
        a(f's_mul_i32 s{S_T0}, s{S_W}, 768\nv_mul_u32_u24 v{vPR}, 48, v250')
        a(f'v_and_b32 v253, 1, v251\nv_lshlrev_b32 v253, 3, v253\nv_lshrrev_b32 v254, 1, v251\nv_lshl_add_u32 v253, v254, 2, v253')
        a(f'v_add3_u32 v{vPW}, v{vPR}, v253, s{S_T0}\nv_lshlrev_b32 v{vL16}, 4, v0')
        a(f's_mul_i32 s{S_T0}, s{S_W}, 2560\nv_mul_u32_u24 v252, 640, v251\nv_lshlrev_b32 v{vGR}, 3, v250\nv_add3_u32 v{vGW}, v252, v{vGR}, s{S_T0}')
        a('v_lshrrev_b32 v252, 2, v0\nv_mul_u32_u24 v252, 160, v252\nv_and_b32 v253, 3, v0\nv_lshl_add_u32 v252, v253, 3, v252')
        a(f's_mul_i32 s{S_T0}, s{S_W}, 5120\ns_add_u32 s{S_T0}, s{S_T0}, {self.B_XT}\nv_add_u32 v{vXT}, s{S_T0}, v252')
        a(f'v_mul_u32_u24 v252, 768, v251\nv_lshl_add_u32 v{vGA}, v250, 4, v252')
        a(f's_lshl_b32 s{S_KVG}, s{S_G}, 4\ns_lshl_b32 s{S_T1}, s{S_W}, 2\ns_add_u32 s{S_KVG}, s{S_KVG}, s{S_T1}\ns_mul_i32 s{S_KVG}, s{S_KVG}, 768\ns_add_u32 s{S_KVG}, s{S_KVG}, {WS_AGG}')
        a(f's_lshl_b32 s{S_BASE}, s{S_CH}, 2\ns_add_u32 s{S_BASE}, s{S_BASE}, s{S_W}\ns_mul_i32 s{S_BASE}, s{S_BASE}, 81920\ns_add_u32 s{S_BASE}, s{S_BASE}, {WS_H}')
        a(f's_lshl_b32 s{S_KVO}, s{S_G}, 13\ns_add_u32 s{S_KVO}, s{S_KVO}, s{S_BASE}')
        a(f's_lshl_b32 s{S_KVB}, s{S_G}, 11\ns_add_u32 s{S_KVB}, s{S_KVB}, s{S_BASE}\ns_add_u32 s{S_KVB}, s{S_KVB}, 65536')
        a('v_lshlrev_b32 v251, 3, v251\nv_sub_u32 v252, v250, v251\nv_mov_b32 v253, 0x3f80\nv_mov_b32 v254, 0x3f800000')
        for H in range(2):
            for m in range(4):
                a(f'v_cmp_eq_u32 vcc, {m-16*H}, v252\nv_cndmask_b32 v{SEL+4*H+m}, 0, v253, vcc')
                a(f'v_cmp_eq_u32 vcc, {m+4-16*H}, v252\nv_cndmask_b32 v{SEL+4*H+m}, v{SEL+4*H+m}, v254, vcc')
        NS = 104
        a(f's_lshl_b32 s{S_T0}, s{S_W}, 2\nv_lshrrev_b32 v251, 4, v0\nv_add_u32 v251, s{S_T0}, v251\nv_cvt_f32_u32 v252, v251')
        a(f'v_mul_f32 v{NS+1}, 0x41000000, v252\nv_sub_f32 v{NS}, 0x42f00000, v{NS+1}')
        a(f's_sub_u32 s{S_T0}, s{S_CH}, 1\nv_sub_u32 v253, s{S_T0}, v251\nv_max_i32 v253, 0, v253\nv_cvt_f32_i32 v253, v253\nv_mul_f32 v{NS+2}, 0x43000000, v253')
        a(f'v_cmp_gt_u32 s[{S_M+6}:{S_M+7}], s{S_CH}, v251')
        a(f'v_mov_b32 v108, {f2u(LOG2E):#x}\nv_mov_b32 v109, 0.15915494')

        def interleave(lists):
            for k in range(max(len(x) for x in lists)):
                for x in lists:
                    if k < len(x):
                        a(x[k])

        def cmac(d, c, p, x):
            if c is None:
                first = f'v_pk_mul_f32 {vr(d, 2)}, {vr(p, 2)}, {vr(x, 2)} op_sel:[0,0] op_sel_hi:[0,1]'
            else:
                first = f'v_pk_fma_f32 {vr(d, 2)}, {vr(p, 2)}, {vr(x, 2)}, {vr(c, 2)} op_sel:[0,0,0] op_sel_hi:[0,1,1]'
            return [first, f'v_pk_fma_f32 {vr(d, 2)}, {vr(p, 2)}, {vr(x, 2)}, {vr(d, 2)} op_sel:[1,1,0] op_sel_hi:[1,0,1] neg_lo:[1,0,0]']

        def bc(r):
            return vr(r & ~1, 2), ('op_sel:[0,1] op_sel_hi:[1,1]' if r & 1 else 'op_sel:[0,0] op_sel_hi:[1,0]')

        def setup(j):
            Z, T, T2 = 110 + 6 * j, 112 + 6 * j, 114 + 6 * j
            ldt, lam = LDT(j), LAM(j)

            def cpow(n, d):
                o = []
                src = Z
                if n is not None:
                    o.append(f'v_pk_mul_f32 {vr(T, 2)}, {vr(Z, 2)}, ' + ' '.join(bc(n)))
                    src = T
                o += [f'v_exp_f32 v{T}, v{src}', f'v_fract_f32 v{T+1}, v{src+1}', f'v_cos_f32 v{T2}, v{T+1}', f'v_sin_f32 v{T2+1}, v{T+1}',
                      f'v_pk_mul_f32 {vr(d, 2)}, {vr(T2, 2)}, ' + ' '.join(bc(T))]
                return o
            o = [f'v_mul_f32 v{ldt}, v108, v{ldt}', f'v_exp_f32 v{ldt}, v{ldt}', f'v_pk_mul_f32 {vr(Z, 2)}, {vr(lam, 2)}, v[108:109]',
                 f'v_cvt_pk_bf16_f32 v{ldt}, v{ldt}, v{ldt}', f'v_lshlrev_b32 v{ldt}, 16, v{ldt}',
                 f'v_pk_mul_f32 {vr(Z, 2)}, {vr(Z, 2)}, ' + ' '.join(bc(ldt))]
            o += cpow(None, PA + 2 * j)
            o += cmac(T, None, PA + 2 * j, PA + 2 * j) + cmac(PA4 + 2 * j, None, T, T) + cmac(PA8 + 2 * j, None, PA4 + 2 * j, PA4 + 2 * j)
            o += cpow(NS, PWG + 2 * j) + cpow(NS + 2, PWH + 2 * j)
            C = PC + 2 * j
            o += [f'v_pk_mul_f32 {vr(T, 2)}, {vr(lam, 2)}, {vr(lam, 2)}', f'v_add_f32 v{T2}, -1.0, v{PA+2*j}', f'v_add_f32 v{T}, v{T}, v{T+1}',
                  f'v_mov_b32 v{T2+1}, v{PA+2*j+1}', f'v_rcp_f32 v{T}, v{T}',
                  f'v_pk_mul_f32 {vr(C, 2)}, {vr(lam, 2)}, {vr(T2, 2)} op_sel:[0,0] op_sel_hi:[0,1]',
                  f'v_pk_fma_f32 {vr(C, 2)}, {vr(lam, 2)}, {vr(T2, 2)}, {vr(C, 2)} op_sel:[1,1,0] op_sel_hi:[1,0,1] neg_hi:[1,0,0]',
                  f'v_add_f32 v{T}, v{T}, v{T}', f'v_pk_mul_f32 {vr(C, 2)}, {vr(C, 2)}, ' + ' '.join(bc(T))]
            o += cpow(NS + 1, Z) + cmac(T, None, C, Z) + cmac(T2, None, PA4 + 2 * j, T)
            o += [f'v_pk_mov_b32 {vr(PAB+4*j, 2)}, {vr(T, 2)}, {vr(T2, 2)} op_sel:[0,0]', f'v_pk_mov_b32 {vr(PAB+4*j+2, 2)}, {vr(T, 2)}, {vr(T2, 2)} op_sel:[1,1]']
            return o
        a('s_waitcnt vmcnt(0)')
        interleave([setup(j) for j in range(5)])
        a('s_waitcnt lgkmcnt(0)')
        self.make_tag()
        self.dump('b_par', range(144, 248))

        def wread(n, reg):
            ks, jj = divmod(n, 10)
            a(f'ds_read_b128 {vr(reg, 4)}, v{vWA+ks} offset:{2048*jj}')
            return 1
        self.mainloop(10, acc, XF, WR, vXA, [vWA, vWA + 1], wread, lambda j: False, self.B_SLOT, 4, False)
        self.stamp(2)
        self.dump('b_acc', range(8, 88))
        U = lambda j, c, s: acc(j + 5 * c, s >> 1) + 2 * (s & 1)
        S = lambda j, c: 88 + 4 * j + 2 * c
        TT = lambda j, c: 108 + 4 * j + 2 * c
        sRE, sIM = 'op_sel:[0,0,0] op_sel_hi:[0,1,1]', 'op_sel:[1,0,0] op_sel_hi:[1,1,1]'

        def step(j, hre, him, ure, uim, tre, tim, dre, dim):
            return [f'v_pk_fma_f32 {vr(tre, 2)}, {vr(PA+2*j, 2)}, {vr(him, 2)}, {vr(ure, 2)} {sIM} neg_lo:[1,0,0] neg_hi:[1,0,0]',
                    f'v_pk_fma_f32 {vr(tim, 2)}, {vr(PA+2*j, 2)}, {vr(hre, 2)}, {vr(uim, 2)} {sIM}',
                    f'v_pk_fma_f32 {vr(dre, 2)}, {vr(PA+2*j, 2)}, {vr(hre, 2)}, {vr(tre, 2)} {sRE}',
                    f'v_pk_fma_f32 {vr(dim, 2)}, {vr(PA+2*j, 2)}, {vr(him, 2)}, {vr(tim, 2)} {sRE}']

        for s in range(1, 4):
            interleave([step(j, U(j, 0, 0) if s == 1 else S(j, 0), U(j, 1, 0) if s == 1 else S(j, 1), U(j, 0, s), U(j, 1, s),
                             TT(j, 0), TT(j, 1), S(j, 0), S(j, 1)) for j in range(5)])
        G = lambda j: 108 + 2 * j
        WT = 128
        interleave([[f'v_fma_f32 v{G(j)}, v{PA4+2*j}, v{S(j, 0)}, v{S(j, 0)+1}',
                     f'v_fma_f32 v{G(j)+1}, v{PA4+2*j}, v{S(j, 1)}, v{S(j, 1)+1}',
                     f'v_fma_f32 v{G(j)}, -v{PA4+2*j+1}, v{S(j, 1)}, v{G(j)}',
                     f'v_fma_f32 v{G(j)+1}, v{PA4+2*j+1}, v{S(j, 0)}, v{G(j)+1}'] for j in range(5)])
        a(f'v_mov_b32 v{WT+10}, 0\nv_mov_b32 v{WT+11}, 0')
        interleave([cmac(WT + 2 * j, None, PWG + 2 * j, G(j)) for j in range(5)])

        def reduce_write(part, WT):
            for Q in range(3):
                r = WT + 4 * Q
                a(f'v_permlane32_swap_b32 v{r}, v{r+1}\nv_permlane32_swap_b32 v{r+2}, v{r+3}')
            for Q in range(3):
                r = WT + 4 * Q
                a(f'v_add_f32 v{r}, v{r}, v{r+1}\nv_add_f32 v{r+2}, v{r+2}, v{r+3}')
            for Q in range(3):
                r = WT + 4 * Q
                a(f'v_permlane16_swap_b32 v{r}, v{r+2}')
            for Q in range(3):
                r = WT + 4 * Q
                a(f'v_add_f32 v{r}, v{r}, v{r+2}')
            for Q in range(3):
                a(f'ds_write_b32 v{vPW}, v{WT+4*Q} offset:{part+16*Q}')
        reduce_write(self.B_PART1, WT)
        for j in range(5):
            a(f'ds_write_b64 v{vGW}, {vr(G(j), 2)} offset:{128*j}')
        a('s_waitcnt lgkmcnt(0)\ns_barrier')
        self.stamp(3)
        self.xcc_issue(250)
        XR = 214
        SET = (108, 118, 128, 214)
        st_ = lambda k, j: SET[k % 4] + 2 * j
        P = lambda j: st_(0, j)

        def rd_g(k, n):
            for j in range(5):
                a(f'ds_read_b64 {vr(st_(k, j), 2)}, v{vGR} offset:{640*n+128*j}')
        rd_g(1, 0)
        rd_g(2, 1)
        for j in range(5):
            a(f'v_mov_b64 {vr(P(j), 2)}, 0')
        Lh, Lt = a.uniq('L_horner'), a.uniq('L_htail')
        a(f's_mov_b32 s{S_CNT}, s{S_W}\ns_cmp_eq_u32 s{S_W}, 0\ns_cbranch_scc1 {Lt}')
        a.label(Lh)
        for k in range(4):
            rd_g(k + 3, k + 2)
            a('s_waitcnt lgkmcnt(10)')
            interleave([cmac(st_(k + 1, j), st_(k + 1, j), PA8 + 2 * j, st_(k, j)) for j in range(5)])
        a(f'v_add_u32 v{vGR}, 2560, v{vGR}\ns_sub_u32 s{S_CNT}, s{S_CNT}, 1\ns_cmp_lg_u32 s{S_CNT}, 0\ns_cbranch_scc1 {Lh}')
        a.label(Lt)
        rd_g(3, 2)
        for k in range(3):
            a(f's_waitcnt lgkmcnt({10-5*k})')
            self.execmask(((1 << 64) - 1) & ~((1 << (16 * (k + 1))) - 1))
            interleave([cmac(st_(k + 1, j), st_(k + 1, j), PA8 + 2 * j, P(j)) + [f'v_mov_b64 {vr(P(j), 2)}, {vr(st_(k + 1, j), 2)}'] for j in range(5)])
        a('s_mov_b64 exec, -1')
        PB = lambda j: 118 + 2 * j
        interleave([[f'v_fma_f32 v{PB(j)}, v{PA4+2*j}, v{P(j)}, v{S(j, 0)}',
                     f'v_fma_f32 v{PB(j)+1}, v{PA4+2*j}, v{P(j)+1}, v{S(j, 1)}',
                     f'v_fma_f32 v{PB(j)}, -v{PA4+2*j+1}, v{P(j)+1}, v{PB(j)}',
                     f'v_fma_f32 v{PB(j)+1}, v{PA4+2*j+1}, v{P(j)}, v{PB(j)+1}'] for j in range(5)])
        for k, src in enumerate((P, PB)):
            interleave([[f'v_mul_f32 v{S(j, 0)+k}, v{PC+2*j}, v{src(j)}',
                         f'v_mul_f32 v{S(j, 1)+k}, v{PC+2*j}, v{src(j)+1}',
                         f'v_fma_f32 v{S(j, 0)+k}, -v{PC+2*j+1}, v{src(j)+1}, v{S(j, 0)+k}',
                         f'v_fma_f32 v{S(j, 1)+k}, v{PC+2*j+1}, v{src(j)}, v{S(j, 1)+k}'] for j in range(5)])
        GD = 128
        top, chk, ok, none, n1_ = (a.uniq(x) for x in ('L_bgp', 'L_bgc', 'L_bgok', 'L_bgn', 'L_bg1'))
        for r in range(0, 12, 2):
            a(f'v_mov_b64 {vr(GD+r, 2)}, 0')

        def ask():
            for Q in range(3):
                a(f'buffer_load_dwordx4 {vr(GD+4*Q, 4)}, v{vGA}, s[{SRDW}:{SRDW+3}], s{S_KVG} offen offset:{256*Q} sc1')
        early_ask = self.o.get('bask', False)
        if early_ask:
            a(f's_mov_b64 exec, s[{S_M+6}:{S_M+7}]\ns_cbranch_execz {n1_}')
            ask()
            a.label(n1_)
            a('s_mov_b64 exec, -1')
        for s in range(4):
            interleave([[f'v_pk_mul_f32 {vr(TT(j, 0), 2)}, {vr(PC+2*j, 2)}, {vr(U(j, 1, s), 2)} op_sel:[1,0] op_sel_hi:[1,1]',
                         f'v_pk_mul_f32 {vr(TT(j, 1), 2)}, {vr(PC+2*j, 2)}, {vr(U(j, 0, s), 2)} op_sel:[1,0] op_sel_hi:[1,1]',
                         f'v_pk_fma_f32 {vr(U(j, 0, s), 2)}, {vr(PC+2*j, 2)}, {vr(U(j, 0, s), 2)}, {vr(TT(j, 0), 2)} {sRE} neg_lo:[0,0,1] neg_hi:[0,0,1]',
                         f'v_pk_fma_f32 {vr(U(j, 1, s), 2)}, {vr(PC+2*j, 2)}, {vr(U(j, 1, s), 2)}, {vr(TT(j, 1), 2)} {sRE}'] for j in range(5)])
        self.stamp(4)
        for m in range(1, 4):
            a(f's_lshr_b32 s{S_M+m}, s{S_TAG}, {8*m}')
        a(f's_mov_b32 s{S_SPIN}, 0\ns_mov_b64 exec, s[{S_M+6}:{S_M+7}]\ns_cbranch_execz {none}')
        if early_ask:
            a(f's_branch {chk}')
        elif int(self.o.get('bob', 0)):
            a(f's_sleep {int(self.o["bob"])}')
        a.label(top)
        ask()
        a.label(chk)
        for Q in range(3):
            a(f's_waitcnt vmcnt({2-Q})')
            for m in range(4):
                tg = f's{S_TAG}' if m == 0 else f's{S_M+m}'
                if Q == 0 and m == 0:
                    a(f'v_xor_b32 v253, {tg}, v{GD}')
                else:
                    a(f'v_bitop3_b32 v253, v253, {tg}, v{GD+4*Q+m} bitop3:0xf6')
        a(f'v_and_b32 v253, 0xff, v253\nv_cmp_ne_u32 vcc, 0, v253\ns_cbranch_vccz {ok}')
        self.spin_check(top, ok)
        a.label(ok)
        a.label(none)
        a(f's_mov_b64 exec, -1\ns_movk_i32 s{S_T0}, 0xff00')
        for r in range(10):
            a(f'v_and_b32 v{GD+r}, s{S_T0}, v{GD+r}')
        WT = 108
        self.stamp(5)
        a(f'v_mov_b32 v{WT+10}, 0\nv_mov_b32 v{WT+11}, 0')
        interleave([cmac(WT + 2 * j, None, PWH + 2 * j, GD + 2 * j) for j in range(5)])
        reduce_write(self.B_PART2, WT)
        a('s_waitcnt lgkmcnt(0)\ns_barrier')
        self.stamp(10)
        HB = lambda w, Q: (108 if w < 3 else 184 - 36) + 12 * w + 4 * Q
        for w in range(4):
            for Q in range(3):
                a(f'ds_read_b128 {vr(HB(w, Q), 4)}, v{vPR} offset:{self.B_PART2+768*w+16*Q}')
        a('s_waitcnt lgkmcnt(6)')
        for j in range(5):
            a(f'v_pk_add_f32 {vr(HB(0, 0)+2*j, 2)}, {vr(HB(0, 0)+2*j, 2)}, {vr(HB(1, 0)+2*j, 2)}')
        a('s_waitcnt lgkmcnt(0)')
        for j in range(5):
            a(f'v_pk_add_f32 {vr(HB(2, 0)+2*j, 2)}, {vr(HB(2, 0)+2*j, 2)}, {vr(HB(3, 0)+2*j, 2)}')
        Hn = lambda j: HB(0, 0) + 2 * j
        for j in range(5):
            a(f'v_pk_add_f32 {vr(Hn(j), 2)}, {vr(Hn(j), 2)}, {vr(HB(2, 0)+2*j, 2)}')
        self.stamp(11)
        bRE, bIM = 'op_sel:[0,0,0] op_sel_hi:[1,0,1]', 'op_sel:[0,1,0] op_sel_hi:[1,1,1]'
        interleave([[f'v_pk_fma_f32 {vr(S(j, 0), 2)}, {vr(PAB+4*j, 2)}, {vr(Hn(j), 2)}, {vr(S(j, 0), 2)} {bRE}',
                     f'v_pk_fma_f32 {vr(S(j, 1), 2)}, {vr(PAB+4*j, 2)}, {vr(Hn(j), 2)}, {vr(S(j, 1), 2)} {bIM}',
                     f'v_pk_fma_f32 {vr(S(j, 0), 2)}, {vr(PAB+4*j+2, 2)}, {vr(Hn(j), 2)}, {vr(S(j, 0), 2)} {bIM} neg_lo:[1,0,0] neg_hi:[1,0,0]',
                     f'v_pk_fma_f32 {vr(S(j, 1), 2)}, {vr(PAB+4*j+2, 2)}, {vr(Hn(j), 2)}, {vr(S(j, 1), 2)} {bRE}'] for j in range(5)])
        PKD = lambda j, c: 154 + 8 * (j & 1) + 4 * c
        TD = lambda j, c, H: 108 + 16 * (j & 1) + 8 * H + 4 * c
        FR = lambda j, H: 174 + 8 * j + 4 * H

        def scan(js):
            for s in range(4):
                interleave([step(j, S(j, 0) if s == 0 else U(j, 0, s-1), S(j, 1) if s == 0 else U(j, 1, s-1),
                                 U(j, 0, s), U(j, 1, s), U(j, 0, s), U(j, 1, s), U(j, 0, s), U(j, 1, s)) for j in js])

        def pack(j):
            for c in range(2):
                n = '-' if c else ''
                for s in range(4):
                    a(f'v_cvt_pk_bf16_f32 v{PKD(j, c)+s}, {n}v{U(j, c, s)}, {n}v{U(j, c, s)+1}')
            for H in range(2):
                for c in range(2):
                    a(f'v_mfma_f32_16x16x32_bf16 {vr(TD(j, c, H), 4)}, {vr(PKD(j, c), 4)}, {vr(SEL+4*H, 4)}, 0')

        def emit(j):
            for H in range(2):
                for c in range(2):
                    for h in range(2):
                        a(f'v_cvt_pk_bf16_f32 v{FR(j, H)+2*c+h}, v{TD(j, c, H)+2*h}, v{TD(j, c, H)+2*h+1}')
                a(f'buffer_store_dwordx4 {vr(FR(j, H), 4)}, v7, s[{SRDW}:{SRDW+3}], s{S_KVO if j < 4 else S_KVB} offen offset:{1024*(2*(j & 1)+H)} {self.ix}')
            if j == 1:
                a(f's_add_u32 s{S_KVO}, s{S_KVO}, 4096')
        def xr_reads():
            for j in range(5):
                for rb in range(2):
                    a(f'ds_read_b64_tr_b16 {vr(XR+4*j+2*rb, 2)}, v{vXT} offset:{2560*rb+32*j}')
        if self.o.get('e2o', True):
            scan([0, 1])
            pack(0)
            pack(1)
            emit(0)
            xr_reads()
            scan([2, 3])
            emit(1)
            pack(2)
            pack(3)
            scan([4])
            emit(2)
            pack(4)
            emit(3)
            emit(4)
        else:
            scan([0, 1])
            pack(0)
            pack(1)
            xr_reads()
            scan([2, 3, 4])
            emit(0)
            pack(2)
            emit(1)
            pack(3)
            emit(2)
            pack(4)
            emit(3)
            emit(4)
        if self.o.get('bs', False):
            a('s_waitcnt lgkmcnt(0)\ns_barrier')
        self.stamp(6)
        self.dump('b_h', range(8, 88))
        acc2 = lambda j, rb: 96 + 4 * (2 * j + rb)
        a(f's_mov_b32 s{S_T0}, 0xffff0000\ns_waitcnt lgkmcnt(0)')
        for j in range(5):
            for rb in range(2):
                A = acc2(j, rb)
                for h in range(2):
                    x = XR + 4 * j + 2 * rb + h
                    a(f'v_lshlrev_b32 v{A+2*h}, 16, v{x}\nv_and_b32 v{A+2*h+1}, s{S_T0}, v{x}')
                d = PD + j
                sel = 'op_sel:[0,1] op_sel_hi:[1,1]' if d & 1 else 'op_sel:[0,0] op_sel_hi:[1,0]'
                for h in range(2):
                    a(f'v_pk_mul_f32 {vr(A+2*h, 2)}, {vr(A+2*h, 2)}, {vr(d & ~1, 2)} {sel}')
        a('v_and_b32 v253, 15, v0\nv_lshrrev_b32 v254, 5, v0\nv_lshrrev_b32 v1, 1, v253\nv_xor_b32 v1, v1, v254\nv_lshlrev_b32 v1, 4, v1')
        a('v_lshl_add_u32 v1, v253, 7, v1\nv_bfe_u32 v254, v0, 4, 1\nv_lshl_add_u32 v1, v254, 3, v1')
        a(f'v_add_u32 v1, {7*20480}, v1')
        for ks in range(1, 4):
            a(f'v_xor_b32 v{1+ks}, {32*ks}, v1')
        self.out_prepare(vOUT, 2560)
        self.out_soffsets()
        self.xcc_eval(250)
        lab = self.hop2(250)
        a('s_mov_b64 exec, -1')
        self.stamp(12)
        a('s_barrier')
        self.stamp(13)
        HR, CR = 8, 56
        q = Cnt(a, 'lgkmcnt', 15)
        vq = Cnt(a, 'vmcnt', 63)
        LEAD = 7
        S_HP, S_END = S_T3, S_T2

        def rd_c(m, it, st, j):
            ks = st % 4
            for c in range(2):
                a(f'ds_read_b64 {vr(CR+4*(m % 10)+2*c, 2)}, v{1+ks} offset:{10240*c+2048*j}')
                q.issue((it, m))

        def ld_h(st, rb, it):
            a(f'buffer_load_dwordx4 {vr(HR+8*(st % 6)+4*rb, 4)}, v{6 if st & 2 else 7}, s[{SRDW}:{SRDW+3}], s{S_HP} offen offset:{2048*(st & 1)+1024*rb} {self.o.get("hx", "sc1")}')
            vq.issue((it, st))
        S_DIR, S_WRAP = S_KC, S_SLOT
        adv = [f's_add_u32 s{S_HP}, s{S_HP}, s{S_DIR}', f's_cmp_eq_u32 s{S_HP}, s{S_END}', f's_cselect_b32 s{S_HP}, s{S_WRAP}, s{S_HP}']
        lit = f'{-20480 & 0xffffffff:#x}'
        vadv = lambda base, d: {base + 4: [f'v_add_u32 v1, {d}, v1'], base + 5: [f'v_add_u32 v2, {d}, v2'],
                                base + 10: [f'v_add_u32 v3, {d}, v3'], base + 15: [f'v_add_u32 v4, {d}, v4']}
        for m in range(LEAD):
            rd_c(m, -1, *divmod(m, 5))
        a(f's_mov_b32 s{S_CNT}, 0\ns_mov_b32 s{S_M}, {lit}\nv_add_u32 v6, 4096, v7')
        a(f's_movk_i32 s{S_DIR}, 8192\ns_add_u32 s{S_END}, s{S_BASE}, 81920\ns_mov_b32 s{S_WRAP}, s{S_BASE}')
        if self.o['bdir']:
            a(f's_sub_u32 s{S_T0}, s{S_BASE}, 8192\ns_add_u32 s{S_T1}, s{S_BASE}, 73728\ns_bitcmp1_b32 s{S_I4}, 0')
            a(f's_cselect_b32 s{S_DIR}, {-8192 & 0xffffffff:#x}, s{S_DIR}\ns_cselect_b32 s{S_END}, s{S_T0}, s{S_END}\ns_cselect_b32 s{S_WRAP}, s{S_T1}, s{S_WRAP}')
        a(f's_sub_u32 s{S_HP}, s{S_KVO}, 4096')
        a('\n'.join(adv))

        late = {10: (2, 0), 11: (2, 1), 13: (3, 0), 14: (3, 1), 17: (4, 0), 18: (4, 1)}
        tail = self.o.get('tail', True)
        pend = []

        def pairs(m0, m1, it, nper, areg, extra, loads, first={}, last=False):
            order = lambda m: divmod(m, 5) if not (last and tail and m >= 40) else (8 + (m - 40) % 4, (m - 40) // 4)
            for m in range(m0, m1):
                st, j = order(m)
                if loads:
                    vq.wait((it, st))
                if m % 2 == 0:
                    q.wait((it, m + 1))
                for rb in range(2):
                    d = vr(acc2(j, rb), 4)
                    a(f'v_mfma_f32_16x16x32_bf16 {d}, {vr(areg(st, rb), 4)}, {vr(CR+4*(m % 10), 4)}, {d}')
                mm = m + LEAD
                if mm < nper:
                    rd_c(mm, it, *order(mm))
                elif not last:
                    rd_c(mm - nper, it + 1, *divmod(mm - nper, 5))
                if loads and m < 40 + 20 * (not last) and j in ((0, 1) if last and st == 6 else (1, 3)):
                    rb = j if last and st == 6 else j >> 1
                    if st + 5 < 12:
                        ld_h(st + 5, rb, it)
                    elif not last:
                        ld_h(st + 5 - 12, rb, it + 1)
                if m in first:
                    ld_h(*first[m], 0)
                if first and m == 16:
                    a('\n'.join(adv))
                for x in extra.get(m, []):
                    a(x)
                if last and tail and m >= 40:
                    if (m - 40) % 4 >= 1:
                        for _ in range(3):
                            if pend:
                                a(pend.pop(0))
                    if (m - 40) % 4 == 3:
                        pend.extend(self.out_block(acc2, vOUT, j))

        def emit_spread(fn, **kw):
            start = len(a.lines)
            fn()
            body = a.lines[start:]
            del a.lines[start:]
            return spread(body, **kw)
        for (m0, m1) in ((0, 10), (10, 20)):
            a.lines += emit_spread(lambda: pairs(m0, m1, -1, 20, lambda st, rb: FR(st, rb), vadv(0, lit), False, late if m0 else {}), tail=0)
            if m0 == 0:
                self.hop2_wait(250, lab)
                self.stamp(7)
                for st in range(2):
                    for rb in range(2):
                        ld_h(st, rb, 0)
                if self.o.get('bq'):
                    a('s_barrier')

        def merge(*dcts):
            out = {}
            for dct in dcts:
                for k_, v_ in dct.items():
                    out.setdefault(k_, []).extend(v_)
            return out
        hreg = lambda st, rb: HR + 8 * (st % 6) + 4 * rb
        extra = merge(vadv(0, lit), vadv(20, lit), vadv(40, lit),
                      {14: adv[:2], 15: adv[2:], 25: ['s_barrier'], 34: adv[:2], 35: adv[2:],
                       47: [f's_add_u32 s{S_CNT}, s{S_CNT}, 1'], 54: adv[:2], 55: adv[2:], 57: [f's_cmp_lt_u32 s{S_CNT}, 2']})
        texts = [emit_spread(lambda: pairs(0, 60, it, 60, hreg, extra, True)) for it in range(2)]
        assert texts[0] == texts[1]
        L = a.uniq('L_bp2')
        a('.p2align 3')
        a.label(L)
        a.lines += texts[1]
        a(f's_cbranch_scc1 {L}')
        extra = merge(vadv(0, f'{7*20480}'), vadv(20, lit), {14: adv[:2], 15: adv[2:]})
        if tail:
            extra = merge(vadv(0, f'{7*20480}'), {14: adv[:2], 15: adv[2:], 24: [f'v_add_u32 v1, {lit}, v1'], 25: [f'v_add_u32 v2, {lit}, v2'],
                                                   30: [f'v_add_u32 v3, {lit}, v3'], 33: [f'v_add_u32 v4, {lit}, v4']})
        a.lines += emit_spread(lambda: pairs(0, 60, 2, 60, hreg, extra, True, last=True), tail=0)
        self.stamp(8)
        if tail:
            a('\n'.join(pend))
        else:
            self.out_stores(acc2, vOUT)
        if self.o['stamps'] or self.o.get('probe'):
            self.stamp(14)
            a('s_waitcnt vmcnt(0)')
        self.epoch_update(15)
        self.end_write_back()
        self.finish()

    def build(self):
        a = self.a
        self.prologue()
        two = self.o.get('two', False)
        if not two:
            self.A_PART, self.A_KVB, self.A_WO = 133120, 160000, 30720
        self.o['na1'] = int(self.o.get('na', 1 if two else 3))
        for side, parts in (('a', (self.a_loader, self.a_compute) if two else (self.a1_loader, self.a1_compute)), ('b', (self.b_loader, self.b_compute))):
            self.o['wt'] = self.wt0 is True or self.wt0 == side
            self.o['prewarm'] = not self.o['wt'] and side in self.o.get('pw', 'ab')
            self.ix = 'sc1' if self.o['wt'] else self.o.get('ix', '')
            if side == 'b' and 'rotB' in self.o:
                self.o['rot'] = self.o['rotB']
            for p, r_ in zip(parts, 'lc'):
                self.role = side + r_
                self.sreg = 7 if self.role == 'al' and two else 248
                p()
        a.label('L_END')
        nt = self.o.get('nt', '')
        if nt:
            out = []
            for l in a.lines:
                if 'buffer_load' in l:
                    which = 'x' if 's[36:39]' in l else 'w' if 's[40:43]' in l else 'c' if 's[44:47]' in l else 'p' if ('buffer_load_dword v25' in l and ('v254, v250' in l or 'v255, v250' in l)) else ''
                    if which and which in nt and 'ushort' not in l:
                        l = l.replace(' lds', ' nt lds') if ' lds' in l else l + ' nt'
                out.append(l)
            a.lines = out
        if self.o.get('x_p2noload'):
            i0 = max(i for i, l in enumerate(a.lines) if l.startswith('L_fok'))
            i1 = min(i for i, l in enumerate(a.lines) if l.startswith('L_fok'))
            i2 = min(i for i, l in enumerate(a.lines) if l.startswith('L_BL'))
            a.lines = [l for i, l in enumerate(a.lines) if not ('buffer_load_dwordx4' in l and ' lds' not in l and (i > i0 or i1 < i < i2))]
        if self.o.get('x_noload'):
            a.lines = [l for l in a.lines if not (' lds' in l and ('s[36:39]' in l or 's[40:43]' in l))]
        lines, n = hazard_pass(a.lines)
        k = NAME + '_kernel'
        head = f'''; fused linear attention block + S5 scan, one persistent launch (256 workgroups, one per CU)
; @launch grid=(256,1,1) block=(512,1,1) lds=163840
.amdgcn_target "amdgcn-amd-amdhsa--gfx950"
.text
.globl {k}
.p2align 8
.type {k},@function
{k}:
'''
        tail = f'''    s_endpgm
.section .rodata,"a"
.p2align 6
.amdhsa_kernel {k}
  .amdhsa_next_free_vgpr 256
  .amdhsa_next_free_sgpr 102
  .amdhsa_accum_offset 256
  .amdhsa_group_segment_fixed_size 0
  .amdhsa_kernarg_size 120
  .amdhsa_user_sgpr_count 2
  .amdhsa_user_sgpr_kernarg_segment_ptr 1
  .amdhsa_system_sgpr_workgroup_id_x 1
.end_amdhsa_kernel
'''
        return head + '\n'.join(lines) + '\n' + tail, n


if __name__ == '__main__':
    opts = {}
    out = f'cdna_kernels/{NAME}.s'
    for arg in sys.argv[1:]:
        k, v = arg.split('=', 1)
        if k == 'out':
            out = v
        else:
            opts[k] = {'1': True, '0': False}.get(v, v)
    text, n = Gen(**opts).build()
    open(out, 'w').write(text)
    print(f'wrote {out}: {len(text.splitlines())} lines, {n} nops inserted')
```

```python
import sys, struct
from asmlib import Asm, Cnt, hazard_pass, vr, sr, spread

NAME = 'concat_heads__linear_attn_block__ssm_conv_s5__prompt'

WS_FLAG = 0x1000
WS_AGG = 0x10000
WS_KVP = 0x30000
WS_S2 = 0xC0000
WS_X2 = 0xF0000
WS_O = 0x100000
WS_H = 0x400000
WS_STAMP = 0x1000000
WS_DUMP = 0x1100000
WS_SIZE = 0x10000000
OOB = 0x7fff0000
SPIN = 200000

P_AX, P_WQKV, P_WO, P_BX, P_LRE, P_LIM, P_BRE, P_BIM = 4, 6, 8, 10, 12, 14, 16, 18
P_CRE, P_CIM, P_LDT, P_DSK, P_OUT, P_DBG, P_WS = 20, 22, 24, 26, 28, 30, 32
S_WAVE, S_SIDE = 34, 35
SRD0, SRD1, SRD2, SRDW = 36, 40, 44, 48
S_CH, S_G, S_I4, S_W, S_TAG = 52, 53, 54, 55, 56
S_KC, S_SLOT = 57, 58
S_T0, S_T1, S_T2, S_T3, S_T4, S_T5 = 59, 60, 61, 62, 63, 64
S_CNT, S_SPIN, S_FAST = 65, 66, 67
S_M = 68
S_XCC = 76
S_KVG, S_KVO, S_BASE, S_KVB = 90, 91, 92, 93
S_ST = 80


def f2u(x):
    return struct.unpack('<I', struct.pack('<f', x))[0]


LOG2E = 1.4426950408889634


def head(x):
    return x // 20


def kvmask(j, b):
    return sum(1 << (16*g+i) for i in range(16) for g in range(4) if head(16*j+i) == head(16*b+4*g))


pieces = [(j, b) for b in range(5) for j in range(5) if kvmask(j, b)]


class Gen:
    def __init__(self, **opt):
        self.o = dict(stamps=False, dump=None, fast=True, wt=True, bs=True, outx='sc1', codepf=True, rot='2', bo=26, na1=1, nc1=3, nc2=3, mw='', bdir=True, spread=True, pf=False, half=True, wb=False, xoff=True, pp=False, rotb=True)
        self.o.update(opt)
        self.wt0 = self.o['wt']
        for k_ in ('na1', 'nc1', 'nc2'):
            self.o[k_] = int(self.o[k_])
        self.a = Asm()
        self.role = ''
        self.sreg = 248

    def srd(self, s, ptr, size):
        a = self.a
        a(f's_mov_b32 s{s}, s{ptr}\ns_mov_b32 s{s+1}, s{ptr+1}\ns_mov_b32 s{s+2}, {size}\ns_mov_b32 s{s+3}, 0x20000')

    def stamp(self, k):
        if self.o.get('probe') == f'{self.role}{k}':
            self.a('s_memrealtime s[84:85]\ns_waitcnt lgkmcnt(0)')
        if self.o['stamps'] and (self.o.get('lst') or not isinstance(k, tuple) or k[0] == 88):
            if self.o.get('rt'):
                self.a(f's_memrealtime s[{S_ST+2}:{S_ST+3}]\ns_waitcnt lgkmcnt(0)\ns_sub_u32 s{S_ST+2}, s{S_ST+2}, s78\ns_mul_i32 s{S_ST+2}, s{S_ST+2}, 10')
            else:
                self.a(f's_memtime s[{S_ST+2}:{S_ST+3}]\ns_waitcnt lgkmcnt(0)\ns_sub_u32 s{S_ST+2}, s{S_ST+2}, s{S_ST}')
            if isinstance(k, tuple):
                self.a(f's_add_u32 s{S_ST+3}, s{k[0]}, {k[1]}\ns_mov_b32 s{S_ST+4}, m0\ns_mov_b32 m0, s{S_ST+3}\nv_writelane_b32 v{self.sreg}, s{S_ST+2}, m0\ns_mov_b32 m0, s{S_ST+4}')
            else:
                self.a(f'v_writelane_b32 v{self.sreg}, s{S_ST+2}, {k}')

    def finish(self):
        a = self.a
        if self.o['stamps']:
            self.stamp(9)
            a(f's_memrealtime s[{S_M}:{S_M+1}]\ns_waitcnt lgkmcnt(0)\nv_writelane_b32 v{self.sreg}, s78, 62\nv_writelane_b32 v{self.sreg}, s{S_M}, 63')
            a(f's_lshl_b32 s{S_T0}, s2, 3\ns_add_u32 s{S_T0}, s{S_T0}, s{S_WAVE}\ns_lshl_b32 s{S_T0}, s{S_T0}, 8\ns_add_u32 s{S_T0}, s{S_T0}, {WS_STAMP}')
            a(f's_mov_b64 exec, -1\nv_lshlrev_b32 v1, 2, v0\nbuffer_store_dword v{self.sreg}, v1, s[{SRDW}:{SRDW+3}], s{S_T0} offen')
        if self.o.get('probe') and self.o['probe'][:2] == self.role:
            self.stamp(9)
            L = a.uniq('L_probe')
            a(f's_waitcnt vmcnt(0)\ns_sub_u32 s84, s84, s78\ns_lshl_b32 s84, s84, 2\ns_add_u32 s84, s84, {int(self.o.get("pbase", 3000))}')
            a.label(L)
            a(f's_memrealtime s[{S_M}:{S_M+1}]\ns_waitcnt lgkmcnt(0)\ns_sub_u32 s{S_M}, s{S_M}, s78\ns_sleep 4\ns_cmp_lt_u32 s{S_M}, s84\ns_cbranch_scc1 {L}')
        if self.o.get('pad'):
            L = a.uniq('L_pad')
            if self.o.get('padwb') and self.role[0] in self.o['padwb']:
                L2, L3 = a.uniq('L_pad'), a.uniq('L_pad')
                a(f's_lshr_b32 s{S_T0}, s2, 3\ns_or_b32 s{S_T0}, s{S_T0}, s{S_WAVE}\ns_cmp_lg_u32 s{S_T0}, 0\ns_cbranch_scc1 {L3}')
                a.label(L2)
                a(f's_memrealtime s[{S_M}:{S_M+1}]\ns_waitcnt lgkmcnt(0)\ns_sub_u32 s{S_M}, s{S_M}, s78\ns_sleep 4\ns_cmp_lt_u32 s{S_M}, 3000\ns_cbranch_scc1 {L2}')
                a('s_waitcnt vmcnt(0)\nbuffer_wbl2 sc1\ns_waitcnt vmcnt(0)')
                a.label(L3)
            a.label(L)
            if self.o['pad'] == 'rt':
                a(f's_memrealtime s[{S_M}:{S_M+1}]\ns_waitcnt lgkmcnt(0)\ns_sub_u32 s{S_M}, s{S_M}, s78\ns_sleep 4\ns_cmp_lt_u32 s{S_M}, 4000\ns_cbranch_scc1 {L}')
            else:
                a(f's_memtime s[{S_M}:{S_M+1}]\ns_waitcnt lgkmcnt(0)\ns_sub_u32 s{S_M}, s{S_M}, s{S_ST}\ns_sleep 4\ns_cmp_lt_u32 s{S_M}, 96000\ns_cbranch_scc1 {L}')
        a('s_endpgm')

    def dump(self, name, regs):
        if self.o['dump'] != name:
            return
        a = self.a
        a(f's_lshl_b32 s{S_T0}, s2, 2\ns_add_u32 s{S_T0}, s{S_T0}, s{S_W}\ns_lshl_b32 s{S_T0}, s{S_T0}, 16\ns_add_u32 s{S_T0}, s{S_T0}, {WS_DUMP}')
        a('s_nop 7\ns_nop 7\nv_lshlrev_b32 v255, 2, v0')
        for n, r in enumerate(regs):
            a(f'buffer_store_dword v{r}, v255, s[{SRDW}:{SRDW+3}], s{S_T0} offen\ns_add_u32 s{S_T0}, s{S_T0}, 256')
        a('s_waitcnt vmcnt(0)')

    def execmask(self, m):
        a = self.a
        lo, hi = m & 0xffffffff, m >> 32
        if m == (1 << 64) - 1:
            a('s_mov_b64 exec, -1')
        else:
            a(f's_mov_b32 exec_lo, {lo:#x}\ns_mov_b32 exec_hi, {hi:#x}')

    def div10(self, dst_q, dst_r, src, tmp=None):
        a = self.a
        a(f'v_mul_u32_u24 v{dst_q}, 6554, v{src}\nv_lshrrev_b32 v{dst_q}, 16, v{dst_q}')
        a(f'v_mad_i32_i24 v{dst_r}, v{dst_q}, -10, v{src}')

    def period_offsets(self, base):
        a = self.a
        a(f's_mul_i32 s{S_T0}, s{S_G}, 160')
        for n in range(5):
            a(f'v_add_u32 v250, {64*n}, v0')
            self.div10(251, 252, 250)
            a(f'v_mul_u32_u24 v251, 1280, v251\nv_lshl_add_u32 v251, v252, 4, v251\nv_add_u32 v{base+n}, s{S_T0}, v251')

    def start_chunk(self, dst):
        a = self.a
        if not self.o['rot']:
            a(f's_mov_b32 s{dst}, 0')
            return
        if self.o['rot'] in ('2', '2i', '3', '4', '4i'):
            r = self.o['rot']
            a(f's_mov_b32 s{dst}, s{S_I4}' if r.endswith('i') else f's_add_u32 s{dst}, s{S_I4}, s{S_G}')
            if r[0] == '2':
                a(f's_and_b32 s{dst}, s{dst}, 1\ns_mul_i32 s{dst}, s{dst}, 5')
            elif r[0] == '3':
                a(f's_mul_i32 s{S_T0}, s{dst}, 86\ns_lshr_b32 s{S_T0}, s{S_T0}, 8\ns_mul_i32 s{S_T0}, s{S_T0}, 3\ns_sub_u32 s{dst}, s{dst}, s{S_T0}')
                a(f's_mul_i32 s{dst}, s{dst}, 10\ns_add_u32 s{dst}, s{dst}, 1\ns_mul_i32 s{dst}, s{dst}, 86\ns_lshr_b32 s{dst}, s{dst}, 8')
            else:
                a(f's_and_b32 s{dst}, s{dst}, 3\ns_mul_i32 s{dst}, s{dst}, 5\ns_add_u32 s{dst}, s{dst}, 1\ns_lshr_b32 s{dst}, s{dst}, 1')
            if self.o['xoff']:
                a(f's_lshr_b32 s{S_T0}, s{S_CH}, 2\ns_add_u32 s{dst}, s{dst}, s{S_T0}')
                a(f's_cmp_ge_u32 s{dst}, 10\ns_cselect_b32 s{S_T0}, 10, 0\ns_sub_u32 s{dst}, s{dst}, s{S_T0}')
            return
        a(f's_mul_i32 s{dst}, s{S_I4}, 5\ns_add_u32 s{dst}, s{dst}, {0 if self.o["pf"] else 1}\ns_lshr_b32 s{dst}, s{dst}, 1')
        if self.o['rotb']:
            a(f's_mul_i32 s{S_T0}, s{S_G}, 5\ns_lshr_b32 s{S_T0}, s{S_T0}, 2\ns_add_u32 s{dst}, s{dst}, s{S_T0}')
            a(f's_cmp_ge_u32 s{dst}, 10\ns_cselect_b32 s{S_T0}, 10, 0\ns_sub_u32 s{dst}, s{dst}, s{S_T0}')
        if self.o['xoff']:
            a(f's_lshr_b32 s{S_T0}, s{S_CH}, 2\ns_add_u32 s{dst}, s{dst}, s{S_T0}')
            a(f's_cmp_ge_u32 s{dst}, 10\ns_cselect_b32 s{S_T0}, 10, 0\ns_sub_u32 s{dst}, s{dst}, s{S_T0}')

    def dense_pf(self, srd, nl, base_code):
        a = self.a
        a(base_code)
        a('v_lshlrev_b32 v246, 7, v0')
        for i in range(0, nl, 64):
            n = min(64, nl - i)
            if n < 64:
                self.execmask((1 << n) - 1)
            a(f'buffer_load_dword v247, v246, s[{srd}:{srd+3}], s{S_T0} offen')
            if n < 64:
                a('s_mov_b64 exec, -1')
            elif i + 64 < nl:
                a(f's_add_u32 s{S_T0}, s{S_T0}, 8192')

    def pp_x(self):
        self.dense_pf(SRD0, 40, f's_lshl_b32 s{S_T0}, s{S_CH}, 3\ns_add_u32 s{S_T0}, s{S_T0}, s{S_G}\ns_lshl_b32 s{S_T0}, s{S_T0}, 2\ns_add_u32 s{S_T0}, s{S_T0}, s{S_W}\ns_mul_i32 s{S_T0}, s{S_T0}, 5120')

    def mod10(self, r):
        if self.o['xoff']:
            self.a(f's_lshr_b32 s{S_T4}, s{S_CH}, 2\ns_add_u32 s{r}, s{r}, s{S_T4}')
            self.a(f's_cmp_ge_u32 s{r}, 10\ns_cselect_b32 s{S_T4}, 10, 0\ns_sub_u32 s{r}, s{r}, s{S_T4}')
        self.a(f's_cmp_ge_u32 s{r}, 10\ns_cselect_b32 s{S_T4}, 10, 0\ns_sub_u32 s{r}, s{r}, s{S_T4}')

    def pf_x(self):
        a = self.a
        L = a.uniq('L_pfx')
        a(f's_cmp_lg_u32 s{S_W}, 3\ns_cbranch_scc1 {L}')
        a(f's_mul_i32 s{S_T0}, s{S_I4}, 5\ns_lshr_b32 s{S_T0}, s{S_T0}, 1\ns_cmp_ge_u32 s{S_G}, 4\ns_cselect_b32 s{S_T1}, 9, 4\ns_add_u32 s{S_T0}, s{S_T0}, s{S_T1}')
        self.mod10(S_T0)
        a(f's_lshl_b32 s{S_T0}, s{S_T0}, 7\ns_and_b32 s{S_T1}, s{S_G}, 3\ns_lshl_b32 s{S_T2}, s{S_CH}, 2\ns_add_u32 s{S_T1}, s{S_T1}, s{S_T2}')
        a(f's_mul_i32 s{S_T1}, s{S_T1}, {32*1280}\ns_add_u32 s{S_T0}, s{S_T0}, s{S_T1}\nv_mul_u32_u24 v246, 1280, v0\ns_mov_b32 exec_hi, 0')
        a(f'buffer_load_dword v247, v246, s[{SRD0}:{SRD0+3}], s{S_T0} offen\ns_mov_b64 exec, -1')
        a.label(L)

    def pf_chunk(self):
        a = self.a
        a(f's_mul_i32 s{S_T0}, s{S_G}, 5\ns_lshr_b32 s{S_T0}, s{S_T0}, 2\ns_cmp_ge_u32 s{S_I4}, 2\ns_cselect_b32 s{S_T1}, 9, 4\ns_add_u32 s{S_T0}, s{S_T0}, s{S_T1}')
        self.mod10(S_T0)

    def next_kc(self):
        a = self.a
        a(f's_add_u32 s{S_KC}, s{S_KC}, 1\ns_cmp_eq_u32 s{S_KC}, 10\ns_cselect_b32 s{S_KC}, 0, s{S_KC}')

    def make_tag(self):
        self.a(f's_mul_i32 s{S_TAG}, s{S_TAG}, 1664525\ns_add_u32 s{S_TAG}, s{S_TAG}, 1013904223\ns_max_u32 s{S_TAG}, s{S_TAG}, 16')

    def flag_base(self, dst):
        a = self.a
        a(f's_lshl_b32 s{dst}, s{S_SIDE}, 4\ns_add_u32 s{dst}, s{dst}, s{S_CH}\ns_lshl_b32 s{dst}, s{dst}, 10\ns_add_u32 s{dst}, s{dst}, {WS_FLAG}')

    def publish_xcc(self, vt=250):
        a = self.a
        L = a.uniq('L_nox')
        a(f's_cmp_lg_u32 s{S_W}, 3\ns_cbranch_scc1 {L}')
        self.flag_base(S_T0)
        a(f's_lshl_b32 s{S_T1}, s{S_G}, 2\ns_add_u32 s{S_T0}, s{S_T0}, s{S_T1}')
        a(f's_xor_b32 s{S_T1}, s{S_TAG}, s{S_XCC}\nv_mov_b32 v{vt}, s{S_T1}\nv_mov_b32 v{vt+1}, 512\ns_mov_b64 exec, 1')
        a(f'buffer_store_dword v{vt}, v{vt+1}, s[{SRDW}:{SRDW+3}], s{S_T0} offen sc1\ns_mov_b64 exec, -1')
        a.label(L)

    def spin_check(self, top, done):
        a = self.a
        a(f's_add_u32 s{S_SPIN}, s{S_SPIN}, 1\ns_cmp_lt_u32 s{S_SPIN}, {SPIN}\ns_cbranch_scc1 {top}')

    def xcc_issue(self, vt):
        a = self.a
        self.flag_base(S_FAST)
        a(f's_lshl_b32 s{S_T5}, s{S_W}, 7\ns_add_u32 s{S_T5}, s{S_T5}, s{S_FAST}\ns_add_u32 s{S_FAST}, s{S_FAST}, 512')
        a(f's_mov_b64 exec, 0xff\nv_lshlrev_b32 v{vt}, 2, v0')
        a(f'buffer_load_dword v{vt+2}, v{vt}, s[{SRDW}:{SRDW+3}], s{S_T5} offen sc1')
        a(f'buffer_load_dword v{vt+1}, v{vt}, s[{SRDW}:{SRDW+3}], s{S_FAST} offen sc1\ns_mov_b64 exec, -1')

    def xcc_eval(self, vt):
        a = self.a
        top, chk, ok = a.uniq('L_xp'), a.uniq('L_xc'), a.uniq('L_xok')
        a(f's_mov_b64 exec, 0xff\ns_mov_b32 s{S_SPIN}, 0\ns_branch {chk}')
        a.label(top)
        a(f'buffer_load_dword v{vt+1}, v{vt}, s[{SRDW}:{SRDW+3}], s{S_FAST} offen sc1')
        a.label(chk)
        a(f's_waitcnt vmcnt(0)\nv_xor_b32 v{vt+1}, s{S_TAG}, v{vt+1}\nv_cmp_le_u32 vcc, 16, v{vt+1}\ns_cbranch_vccz {ok}')
        self.spin_check(top, ok)
        a.label(ok)
        a(f'v_cmp_ne_u32 vcc, s{S_XCC}, v{vt+1}\ns_nop 0\ns_cmp_eq_u64 vcc, 0\ns_cselect_b32 s{S_FAST}, 1, 0\ns_mov_b64 exec, -1')
        if not self.o['fast']:
            a(f's_mov_b32 s{S_FAST}, 0')

    def hop2(self, vt):
        a = self.a
        slow, go, top, ok, done = (a.uniq(x) for x in ('L_slow', 'L_go', 'L_fp', 'L_fok', 'L_fdone'))
        self.flag_base(S_T4)
        a(f's_lshl_b32 s{S_T5}, s{S_W}, 7\ns_add_u32 s{S_T4}, s{S_T4}, s{S_T5}')
        a(f's_lshl_b32 s{S_T5}, s{S_G}, 2\ns_add_u32 s{S_T5}, s{S_T5}, s{S_T4}')
        a(f'v_mov_b32 v{vt}, s{S_TAG}\nv_mov_b32 v{vt+1}, 0\nv_lshlrev_b32 v{vt+2}, 2, v0\ns_mov_b32 s{S_SPIN}, 0')
        a(f's_waitcnt vmcnt(0)\ns_mov_b64 exec, 1\ns_cmp_eq_u32 s{S_FAST}, 0\ns_cbranch_scc1 {slow}')
        a(f'buffer_store_dword v{vt}, v{vt+1}, s[{SRDW}:{SRDW+3}], s{S_T5} offen\ns_branch {go}')
        a.label(slow)
        if not self.o['wt']:
            a('buffer_wbl2 sc1\ns_waitcnt vmcnt(0)')
        a(f'buffer_store_dword v{vt}, v{vt+1}, s[{SRDW}:{SRDW+3}], s{S_T5} offen sc1')
        a.label(go)
        a('s_mov_b64 exec, 0xff')
        return (top, ok, done)

    def hop2_wait(self, vt, labels):
        a = self.a
        top, ok, done = labels
        a('s_mov_b64 exec, 0xff')
        a.label(top)
        a(f'buffer_load_dword v{vt+1}, v{vt+2}, s[{SRDW}:{SRDW+3}], s{S_T4} offen sc1\ns_waitcnt vmcnt(0)')
        a(f'v_cmp_ne_u32 vcc, s{S_TAG}, v{vt+1}\ns_cbranch_vccz {ok}')
        self.spin_check(top, ok)
        a.label(ok)
        a('s_mov_b64 exec, -1')
        if not self.o['wt']:
            a(f's_cmp_eq_u32 s{S_FAST}, 1\ns_cbranch_scc1 {done}')
            a('buffer_inv sc1\ns_waitcnt vmcnt(0)')
            a.label(done)

    def write_back(self):
        if not self.o['wb']:
            return
        a = self.a
        L = a.uniq('L_nwb')
        a(f's_lshr_b32 s{S_T0}, s2, 3\ns_or_b32 s{S_T0}, s{S_T0}, s{S_W}\ns_cmp_lg_u32 s{S_T0}, 0\ns_cbranch_scc1 {L}')
        a('buffer_wbl2 sc1\ns_waitcnt vmcnt(0)')
        a.label(L)

    def end_write_back(self):
        if self.role[0] not in self.o.get('wbe', ''):
            return
        a = self.a
        L = a.uniq('L_nwe')
        a(f's_lshr_b32 s{S_T0}, s2, 3\ns_or_b32 s{S_T0}, s{S_T0}, s{S_W}\ns_cmp_lg_u32 s{S_T0}, 0\ns_cbranch_scc1 {L}')
        a('buffer_wbl2 sc1')
        a.label(L)

    def epoch_update(self, chunk):
        a = self.a
        L = a.uniq('L_noep')
        a(f's_or_b32 s{S_T0}, s{S_G}, s{S_W}\ns_cmp_lg_u32 s{S_T0}, 0\ns_cbranch_scc1 {L}')
        a(f's_cmp_lg_u32 s{S_CH}, {chunk}\ns_cbranch_scc1 {L}')
        a(f's_lshl_b32 s{S_T0}, s{S_SIDE}, 8\nv_mov_b32 v250, s{S_TAG}\nv_mov_b32 v251, 0\ns_mov_b64 exec, 1')
        a(f'buffer_store_dword v250, v251, s[{SRDW}:{SRDW+3}], s{S_T0} offen sc1\ns_mov_b64 exec, -1')
        a.label(L)

    def out_prepare(self, vreg, coff):
        a = self.a
        self.srd(SRD2, P_OUT, 2048 * 1280 * 4)
        a(f'v_lshrrev_b32 v253, 4, v0\nv_mul_u32_u24 v253, {4*5120}, v253\nv_and_b32 v254, 15, v0\nv_lshl_add_u32 v253, v254, 2, v253')
        a(f's_lshl_b32 s{S_T0}, s{S_CH}, 2\ns_add_u32 s{S_T0}, s{S_T0}, s{S_W}\ns_mul_i32 s{S_T0}, s{S_T0}, {32*5120}')
        a(f's_mul_i32 s{S_T1}, s{S_G}, 320\ns_add_u32 s{S_T0}, s{S_T0}, s{S_T1}')
        if coff:
            a(f's_add_u32 s{S_T0}, s{S_T0}, {coff}')
        a(f'v_add_u32 v{vreg}, s{S_T0}, v253')

    def out_soffsets(self):
        for rb in range(2):
            for r in range(4):
                self.a(f's_mov_b32 s{94+4*rb+r}, {(16*rb+r)*5120}')

    def out_block(self, acc, vreg, j):
        return [f'buffer_store_dword v{acc(j, rb)+r}, v{vreg}, s[{SRD2}:{SRD2+3}], s{94+4*rb+r} offen offset:{64*j} {self.o["outx"]}'
                for rb in range(2) for r in range(4)]

    def out_stores(self, acc, vreg):
        a = self.a
        a(f's_mov_b32 s{S_T0}, 0')
        for rb in range(2):
            for r in range(4):
                for j in range(5):
                    a(f'buffer_store_dword v{acc(j, rb)+r}, v{vreg}, s[{SRD2}:{SRD2+3}], s{S_T0} offen offset:{64*j} {self.o["outx"]}')
                if (rb, r) != (1, 3):
                    a(f's_add_u32 s{S_T0}, s{S_T0}, {5120 if r < 3 else 13*5120}')

    def prologue(self):
        a = self.a
        a('s_cmp_ge_u32 s2, 256\ns_cbranch_scc1 L_exit')
        a('s_load_dwordx16 s[4:19], s[0:1], 0\ns_load_dwordx8 s[20:27], s[0:1], 64\ns_load_dwordx4 s[28:31], s[0:1], 96\ns_load_dwordx2 s[32:33], s[0:1], 112')
        if self.o.get('ipf'):
            a(f's_getpc_b64 s[{S_M}:{S_M+1}]')
            a.label('L_ipf')
            for lab in ('L_BL', 'L_AC', 'L_BC'):
                a(f's_add_u32 s{S_M+2}, s{S_M}, {lab}-L_ipf\ns_addc_u32 s{S_M+3}, s{S_M+1}, 0')
                for k in range(int(self.o['ipf'])):
                    a(f's_load_dword s89, s[{S_M+2}:{S_M+3}], {64*k}')
        if self.o.get('probe'):
            a('s_memrealtime s[78:79]\ns_memrealtime s[84:85]')
        if self.o['stamps'] or self.o.get('pad'):
            a(f's_memrealtime s[78:79]\ns_memtime s[{S_ST}:{S_ST+1}]')
            a('v_mov_b32 v248, -1\nv_mov_b32 v7, -1')
        a(f'v_lshrrev_b32 v1, 6, v0\nv_and_b32 v0, 63, v0\nv_readfirstlane_b32 s{S_WAVE}, v1')
        a(f's_and_b32 s{S_T0}, s2, 7\ns_lshr_b32 s{S_T1}, s2, 3\ns_lshr_b32 s{S_SIDE}, s{S_T0}, 2')
        a(f's_lshr_b32 s{S_I4}, s{S_T1}, 3\ns_and_b32 s{S_G}, s{S_T1}, 7')
        a(f's_and_b32 s{S_T0}, s{S_T0}, 3\ns_lshl_b32 s{S_CH}, s{S_T0}, 2\ns_add_u32 s{S_CH}, s{S_CH}, s{S_I4}')
        a(f's_getreg_b32 s{S_XCC}, hwreg(HW_REG_XCC_ID, 0, 4)')
        a(f's_and_b32 s{S_W}, s{S_WAVE}, 3')
        if self.o.get('delay'):
            sd, ticks = self.o['delay'][0], int(self.o['delay'][1:])
            a(f's_cmp_lg_u32 s{S_SIDE}, {"ab".index(sd)}\ns_cbranch_scc1 L_nodelay\ns_memrealtime s[{S_M}:{S_M+1}]\ns_waitcnt lgkmcnt(0)')
            a.label('L_delay')
            a(f's_memrealtime s[{S_M+2}:{S_M+3}]\ns_waitcnt lgkmcnt(0)\ns_sub_u32 s{S_M+2}, s{S_M+2}, s{S_M}\ns_cmp_lt_u32 s{S_M+2}, {ticks}\ns_cbranch_scc1 L_delay')
            a.label('L_nodelay')
        a(f's_cmp_eq_u32 s{S_SIDE}, 1\ns_cbranch_scc1 L_B')
        a(f's_cmp_ge_u32 s{S_WAVE}, 4\ns_cbranch_scc1 L_AL\ns_branch L_AC')
        a.label('L_exit')
        a('s_endpgm')
        a.label('L_B')
        a(f's_cmp_ge_u32 s{S_WAVE}, 4\ns_cbranch_scc1 L_BL\ns_branch L_BC')

    def load_epoch(self):
        a = self.a
        if self.o.get('prio') == 'l' and self.role[1] == 'l':
            a('s_setprio 1')
        a(f's_lshl_b32 s{S_T0}, s{S_SIDE}, 8\ns_load_dword s{S_TAG}, s[{P_WS}:{P_WS+1}], s{S_T0}')

    def x_offsets(self, base, permuted):
        a = self.a
        a(f's_lshl_b32 s{S_T0}, s{S_CH}, 2\ns_add_u32 s{S_T0}, s{S_T0}, s{S_W}\ns_mul_i32 s{S_T0}, s{S_T0}, {32*1280}')
        a('v_lshrrev_b32 v250, 4, v0\nv_and_b32 v251, 7, v0\nv_xor_b32 v250, v250, v251\nv_lshlrev_b32 v250, 4, v250')
        if not permuted:
            a('v_lshrrev_b32 v251, 3, v0')
            step = lambda n: 8 * n
        else:
            a('v_lshrrev_b32 v251, 5, v0\nv_lshlrev_b32 v251, 3, v251\nv_bfe_u32 v252, v0, 3, 1\nv_lshl_add_u32 v251, v252, 2, v251')
            a('v_bfe_u32 v252, v0, 4, 1\nv_add_u32 v251, v251, v252')
            step = lambda n: 16 * (n & 1) + 2 * (n >> 1)
        a(f'v_mul_u32_u24 v251, 1280, v251\nv_add_u32 v251, s{S_T0}, v251')
        a('v_xor_b32 v252, 64, v250\nv_add_u32 v250, v250, v251\nv_add_u32 v252, v252, v251')
        for n in range(4):
            src = 252 if n & 1 else 250
            a(f'v_add_u32 v{base+n}, {step(n)*1280}, v{src}')

    def tlb_touch(self, wsbase, wsper, ptrs):
        mode = self.o.get('tlb', '')
        if not mode:
            return
        a = self.a
        a(f's_lshl_b32 s{S_T0}, s{S_CH}, 2\ns_add_u32 s{S_T0}, s{S_T0}, s{S_W}\ns_mul_i32 s{S_T1}, s{S_T0}, {wsper}\ns_add_u32 s{S_T1}, s{S_T1}, {wsbase}')
        a(f's_mul_i32 s{S_T0}, s{S_T0}, {32*5120}')
        if mode == 's':
            a(f's_load_dword s86, s[{P_WS}:{P_WS+1}], s{S_T1}\ns_load_dword s87, s[{P_OUT}:{P_OUT+1}], s{S_T0}')
            for p in ptrs:
                a(f's_load_dword s88, s[{p}:{p+1}], 0')
        else:
            a(f'v_mov_b32 v246, s{S_T1}\nv_mov_b32 v247, s{S_T0}\nv_mov_b32 v245, 0\ns_mov_b64 exec, 1')
            a(f'global_load_dword v255, v246, s[{P_WS}:{P_WS+1}]\nglobal_load_dword v255, v247, s[{P_OUT}:{P_OUT+1}]')
            for p in ptrs:
                a(f'global_load_dword v255, v245, s[{p}:{p+1}]')
            a('s_mov_b64 exec, -1')

    def code_prefetch(self, first, last):
        if not self.o['codepf']:
            return
        a = self.a
        L = a.uniq('L_pc')
        a(f's_getpc_b64 s[{S_M}:{S_M+1}]')
        a.label(L)
        a(f's_sub_u32 s{S_M}, s{S_M}, {L}-{first}\ns_subb_u32 s{S_M+1}, s{S_M+1}, 0')
        a(f's_lshl_b32 s{S_T0}, s{S_I4}, 3\ns_add_u32 s{S_T0}, s{S_T0}, s{S_G}\ns_lshl_b32 s{S_T0}, s{S_T0}, 7')
        a(f'v_lshlrev_b32 v249, 12, v0\nv_add_u32 v249, s{S_T0}, v249\nv_cmp_gt_u32 vcc, {last}-{first}, v249')
        S = a.uniq('L_pcs')
        a(f's_and_saveexec_b64 s[{S_M+2}:{S_M+3}], vcc\ns_cbranch_execz {S}')
        a(f'global_load_dword v255, v249, s[{S_M}:{S_M+1}]')
        a.label(S)
        a('s_mov_b64 exec, -1')

    def mainloop(self, nblk, acc, XF, WR, vXA, vWA, wread, swapped, slotsize, nslots, release_wait, LEAD=7, slot0=0):
        a = self.a
        R = 10
        NF = 2 * nblk
        assert NF % R == 0
        q = Cnt(a, 'lgkmcnt', 15)

        def rd_x(ks, tagc):
            for rb in range(2):
                a(f'ds_read_b128 {vr(XF+8*ks+4*rb, 4)}, v{vXA+ks} offset:{2048*rb}')
                q.issue(('x', tagc, ks))

        def rd_w(n, tagc):
            ks, j = divmod(n, nblk)
            if j == 0:
                rd_x(ks, tagc)
            for _ in range(wread(n % NF, WR + 4 * (n % R))):
                q.issue(('w', tagc, n))

        def advance():
            for v in [vXA, vXA + 1] + vWA:
                a(f'v_add_u32 v{v}, s{S_T0}, v{v}')
        bar = NF - LEAD
        pos = {}
        for m in range(LEAD, NF):
            pos[m] = m - LEAD
        if release_wait:
            for k, m in enumerate(range(NF - 4, NF)):
                pos[m] = bar - 4 + k // 2
        if self.o.get('prio') == 'c':
            a('s_setprio 1')
        a(f's_mov_b32 s{S_SLOT}, {slot0}\ns_mov_b32 s{S_CNT}, 0\ns_mov_b32 s{S_T1}, {slotsize}\ns_barrier')
        self.stamp(1)
        for m in range(LEAD):
            rd_w(m, 0)
        texts = []
        Lnb = a.uniq('L_nb')
        for it in range(3):
            start = len(a.lines)
            for n in range(NF):
                ks, j = divmod(n, nblk)
                if n == bar:
                    advance()
                    a(f's_cmp_eq_u32 s{S_CNT}, 9')
                    if release_wait:
                        q.waitall()
                    a(f's_cbranch_scc1 {Lnb}\ns_barrier')
                    a.label(Lnb)
                q.wait(('w', it, n))
                if j == 0:
                    q.wait(('x', it, ks))
                w = vr(WR + 4 * (n % R), 4)
                for rb in range(2):
                    x = vr(XF + 8 * ks + 4 * rb, 4)
                    d = vr(acc(j, rb), 4)
                    if swapped(j):
                        a(f'v_mfma_f32_16x16x32_bf16 {d}, {w}, {x}, {d}')
                    else:
                        a(f'v_mfma_f32_16x16x32_bf16 {d}, {x}, {w}, {d}')
                for m in range(LEAD, NF):
                    if pos[m] == n:
                        rd_w(m, it)
                if n >= bar:
                    rd_w(n - bar, it + 1)
                if n == 2:
                    a(f's_add_u32 s{S_SLOT}, s{S_SLOT}, 1\ns_cmp_eq_u32 s{S_SLOT}, {nslots}')
                    a(f's_cselect_b32 s{S_T0}, {-(nslots-1)*slotsize & 0xffffffff:#x}, s{S_T1}\ns_cselect_b32 s{S_SLOT}, 0, s{S_SLOT}')
                if n == NF - 3:
                    a(f's_add_u32 s{S_CNT}, s{S_CNT}, 1\ns_cmp_lt_u32 s{S_CNT}, 10')
            texts.append(a.lines[start:])
            del a.lines[start:]
        assert texts[1] == texts[2]
        body = texts[1]
        if texts[0] != texts[1]:
            a('s_waitcnt lgkmcnt(0)')
        if self.o.get('x_nomfma'):
            body = [l for l in body if 'v_mfma' not in l]
        if self.o.get('x_nods'):
            body = [l for l in body if 'ds_read' not in l]
        L = a.uniq('L_main')
        a('.p2align 3')
        a.label(L)
        a.lines += spread(body) if self.o['spread'] else body
        a(f's_cbranch_scc1 {L}')
        a('s_waitcnt lgkmcnt(0)')

    A_R0, A_SLOT = 51200, 36864
    A_PART = 131552
    A_KVB = 158432
    A_CNT = 161792
    A_WO = 0

    def g1_setup(self, vPOS):
        a = self.a
        for h, code in enumerate((f's_lshl_b32 s{S_T0}, s{S_W}, 6', f's_mul_i32 s{S_T0}, s{S_W}, 6\ns_add_u32 s{S_T0}, s{S_T0}, 256')):
            vp = vPOS + 3 * h
            a(code + f'\nv_add_u32 v{vp}, s{S_T0}, v0\nv_mul_u32_u24 v{vp+2}, 12, v{vp}\nv_add_u32 v{vp+2}, {self.A_KVB}, v{vp+2}\nv_lshlrev_b32 v{vp}, 4, v{vp}')

    def g1_run(self, vPOS):
        a = self.a
        D = lambda h, n: 24 + 64 * h + 4 * n
        ACC = lambda h: 184 + 6 * h
        TMP = 196
        S_PEND = S_CNT
        ok, top2 = a.uniq('L_gok'), a.uniq('L_gr')
        for k in range(6):
            a(f'v_mov_b64 {vr(ACC(0)+2*k, 2)}, 0')
        a(f's_mov_b32 s{S_SPIN}, 0\ns_mov_b32 s{S_T3}, 0xffff0000\ns_mov_b32 s{S_PEND}, 0xffff\ns_add_u32 s{S_T1}, s{S_KVG}, {16*4480}')

        if int(self.o.get('bo', 0)):
            a(f's_sleep {int(self.o["bo"])}')

        def ask(n, x):
            a(f'buffer_load_dwordx4 {vr(D(0, n), 4)}, v{vPOS}, s[{SRDW}:{SRDW+3}], s{S_T0} offen {x}\ns_mov_b64 exec, 0x3f')
            a(f'buffer_load_dwordx4 {vr(D(1, n), 4)}, v{vPOS+3}, s[{SRDW}:{SRDW+3}], s{S_T0} offen {x}\ns_mov_b64 exec, -1')

        def take(n, left, bit):
            sk = a.uniq('L_gs')
            a(f's_waitcnt vmcnt({left})\nv_cmp_ne_u32 vcc, s{S_TAG}, v{D(0, n)+3}\nv_cmp_ne_u32 s[{S_M}:{S_M+1}], s{S_TAG}, v{D(1, n)+3}')
            a(f's_and_b64 s[{S_M}:{S_M+1}], s[{S_M}:{S_M+1}], 63\ns_or_b64 s[{S_M}:{S_M+1}], s[{S_M}:{S_M+1}], vcc\ns_cbranch_scc1 {sk}')
            a(f's_bitset0_b32 s{S_PEND}, {bit}')
            for h in range(2):
                for k in range(3):
                    a(f'v_lshlrev_b32 v{TMP+2*k}, 16, v{D(h, n)+k}\nv_and_b32 v{TMP+2*k+1}, s{S_T3}, v{D(h, n)+k}')
                for k in range(3):
                    a(f'v_pk_add_f32 {vr(ACC(h)+2*k, 2)}, {vr(ACC(h)+2*k, 2)}, {vr(TMP+2*k, 2)}')
            a.label(sk)
        a(f's_mul_i32 s{S_T0}, s{S_I4}, {4*4480}\ns_add_u32 s{S_T0}, s{S_T0}, s{S_KVG}')
        for n in range(16):
            ask(n, self.o.get('g1', 'sc1'))
            if n < 15:
                a(f's_add_u32 s{S_T0}, s{S_T0}, 4480')
                if n % 4 == 3:
                    a(f's_cmp_eq_u32 s{S_T0}, s{S_T1}\ns_cselect_b32 s{S_T0}, s{S_KVG}, s{S_T0}')
        for n in range(16):
            take(n, 30 - 2 * n, n)
        self.stamp(12)
        a(f's_cmp_eq_u32 s{S_PEND}, 0\ns_cbranch_scc1 {ok}')
        a.label(top2)
        a(f's_mov_b32 s{S_T1}, s{S_PEND}')
        for n in range(4):
            a(f's_ff1_i32_b32 s{S_ST+14+n}, s{S_T1}\ns_bitset0_b32 s{S_T1}, s{S_ST+14+n}')
            a(f's_lshl_b32 s{S_T0}, s{S_I4}, 2\ns_add_u32 s{S_T0}, s{S_T0}, s{S_ST+14+n}\ns_and_b32 s{S_T0}, s{S_T0}, 15\ns_mul_i32 s{S_T0}, s{S_T0}, 4480')
            a(f's_add_u32 s{S_T0}, s{S_T0}, s{S_KVG}\ns_cmp_lt_i32 s{S_ST+14+n}, 0\ns_cselect_b32 s{S_T0}, {OOB:#x}, s{S_T0}')
            ask(n, 'sc1')
        for n in range(4):
            take(n, 6 - 2 * n, f's{S_ST+14+n}')
        a(f's_cmp_eq_u32 s{S_PEND}, 0\ns_cbranch_scc1 {ok}')
        self.spin_check(top2, ok)
        a.label(ok)
        for h in range(2):
            if h:
                a('s_mov_b64 exec, 0x3f')
            for k in range(3):
                a(f'v_cvt_pk_bf16_f32 v{TMP+3*h+k}, v{ACC(h)+2*k}, v{ACC(h)+2*k+1}\nds_write_b32 v{vPOS+3*h+2}, v{TMP+3*h+k} offset:{4*k}')
        a('s_mov_b64 exec, -1\ns_waitcnt lgkmcnt(0)')

    def g2_setup(self):
        a = self.a
        vG1, vG2, vS2, vK1, vG3, vK3 = 204, 207, 200, 201, 202, 203
        S_S2, S_X2 = 86, 87
        a(f's_mul_i32 s{S_T0}, s{S_I4}, 70\ns_lshl_b32 s{S_T1}, s{S_W}, 4\ns_add_u32 s{S_T1}, s{S_T1}, s{S_T0}')
        a(f'v_add_u32 v252, s{S_T1}, v250\nv_mul_u32_u24 v253, 4480, v251\nv_lshl_add_u32 v{vG1}, v252, 4, v253')
        a(f's_lshl_b32 s{S_T2}, s{S_W}, 1\ns_min_u32 s{S_T2}, s{S_T2}, 4\ns_add_u32 s{S_T2}, s{S_T2}, 64\ns_add_u32 s{S_T5}, s{S_T2}, s{S_T0}')
        a(f'v_and_b32 v253, 1, v0\nv_add_u32 v254, s{S_T5}, v253\nv_bfe_u32 v253, v0, 1, 4\nv_mul_u32_u24 v253, 4480, v253\nv_lshl_add_u32 v{vG2}, v254, 4, v253')
        a(f's_mov_b64 vcc, 0xffff\nv_cndmask_b32 v252, v254, v252, vcc')
        a(f'v_mul_u32_u24 v253, 12, v252\nv_add_u32 v{vK1}, {self.A_KVB}, v253\nv_subrev_u32 v252, s{S_T0}, v252\nv_lshlrev_b32 v{vS2}, 4, v252')
        a(f's_lshl_b32 s{S_T1}, s{S_W}, 6\nv_add_u32 v252, s{S_T1}, v0\nv_mul_u32_u24 v253, 937, v252\nv_lshrrev_b32 v253, 16, v253')
        a(f'v_mul_u32_u24 v254, 70, v253\nv_sub_u32 v254, v252, v254\ns_add_u32 s{S_T1}, s{S_I4}, 1\nv_add_u32 v253, s{S_T1}, v253\nv_and_b32 v253, 3, v253')
        a(f'v_mul_u32_u24 v252, 1152, v253\nv_lshl_add_u32 v{vG3}, v254, 4, v252')
        a(f'v_mul_u32_u24 v253, 70, v253\nv_add_u32 v253, v253, v254\nv_mul_u32_u24 v253, 12, v253\nv_add_u32 v{vK3}, {self.A_KVB}, v253')
        a(f's_lshr_b32 s{S_T0}, s{S_CH}, 2\ns_lshl_b32 s{S_T0}, s{S_T0}, 3\ns_add_u32 s{S_T0}, s{S_T0}, s{S_G}')
        a(f's_mul_i32 s{S_S2}, s{S_T0}, {4*1152}\ns_add_u32 s{S_S2}, s{S_S2}, {WS_S2}\ns_lshl_b32 s{S_X2}, s{S_T0}, 7\ns_add_u32 s{S_X2}, s{S_X2}, {WS_X2}')

    def g2_early(self):
        a = self.a
        vG1, vG2, vS2, vK1, vG3, vK3 = 204, 207, 200, 201, 202, 203
        S_S2, S_X2 = 86, 87
        Lx = a.uniq('L_x2')
        a(f's_cmp_lg_u32 s{S_W}, 1\ns_cbranch_scc1 {Lx}')
        a(f's_mul_i32 s{S_T0}, s{S_I4}, 1152\ns_add_u32 s{S_T0}, s{S_T0}, s{S_S2}\nv_lshlrev_b32 v252, 7, v0\ns_mov_b64 exec, 0x1ff')
        a(f'buffer_load_dword v255, v252, s[{SRDW}:{SRDW+3}], s{S_T0} offen sc1')
        a(f's_xor_b32 s{S_T0}, s{S_TAG}, s{S_XCC}\nv_mov_b32 v253, s{S_T0}\ns_lshl_b32 s{S_T0}, s{S_I4}, 2\ns_add_u32 s{S_T0}, s{S_T0}, s{S_X2}\ns_mov_b64 exec, 1')
        a(f'buffer_store_dword v253, v252, s[{SRDW}:{SRDW+3}], s{S_T0} offen sc1\ns_mov_b64 exec, -1')
        a.label(Lx)

    def g2_run(self):
        a = self.a
        vG1, vG2, vS2, vK1, vG3, vK3 = 204, 207, 200, 201, 202, 203
        S_S2, S_X2 = 86, 87
        D = lambda m: 24 + 4 * m
        ACC = lambda h: 48 + 6 * h
        OUT = 68
        UP = lambda m: (ACC(0), 72, 78, 84, ACC(1))[m]
        S_PEND = S_CNT
        top, ok = a.uniq('L_gp'), a.uniq('L_gok')
        a(f'v_lshlrev_b32 v250, 2, v0\ns_mov_b64 exec, 15\nbuffer_load_dword v251, v250, s[{SRDW}:{SRDW+3}], s{S_X2} offen sc1\ns_mov_b64 exec, -1')
        for k in range(3):
            a(f'v_mov_b64 {vr(ACC(1)+2*k, 2)}, 0')
        a(f's_mov_b32 s{S_SPIN}, 0\ns_mov_b32 s{S_T3}, 0xffff0000\ns_mov_b32 s{S_PEND}, 31\nv_mov_b32 v{OUT+3}, s{S_TAG}')
        if int(self.o.get('bo', 0)):
            a(f's_sleep {int(self.o["bo"])}')
        a.label(top)
        for m in range(5):
            a(f's_add_u32 s{S_T0}, s{S_KVG}, {4*4480*(m % 4)}\ns_bitcmp1_b32 s{S_PEND}, {m}\ns_cselect_b32 s{S_T0}, s{S_T0}, {OOB:#x}')
            if m == 4:
                a('s_mov_b32 exec_hi, 0')
            a(f'buffer_load_dwordx4 {vr(D(m), 4)}, v{vG1 if m < 4 else vG2}, s[{SRDW}:{SRDW+3}], s{S_T0} offen {self.o.get("gx", "sc1")}')
        a('s_mov_b64 exec, -1')
        for m in range(5):
            sk = a.uniq('L_gs')
            if m == 4:
                a('s_mov_b32 exec_hi, 0')
            a(f's_waitcnt vmcnt({4-m})\nv_cmp_ne_u32 vcc, s{S_TAG}, v{D(m)+3}\ns_cbranch_vccnz {sk}\ns_bitset0_b32 s{S_PEND}, {m}')
            u = UP(m)
            for k in range(3):
                a(f'v_lshlrev_b32 v{u+2*k}, 16, v{D(m)+k}\nv_and_b32 v{u+2*k+1}, s{S_T3}, v{D(m)+k}')
            a.label(sk)
        a('s_mov_b64 exec, -1')
        if self.o.get('gst'):
            a(f's_min_u32 s88, s{S_SPIN}, 14')
            self.stamp((88, 20))
            a(f's_add_u32 s88, s88, 40\ns_mov_b32 m0, s88\nv_writelane_b32 v{self.sreg}, s{S_PEND}, m0')
        a(f's_cmp_eq_u32 s{S_PEND}, 0\ns_cbranch_scc1 {ok}')
        if int(self.o.get('bor', 0)):
            a(f's_sleep {int(self.o["bor"])}')
        self.spin_check(top, ok)
        a.label(ok)
        self.stamp(12)
        for k in range(3):
            a(f'v_pk_add_f32 {vr(UP(0)+2*k, 2)}, {vr(UP(0)+2*k, 2)}, {vr(UP(1)+2*k, 2)}\nv_pk_add_f32 {vr(UP(2)+2*k, 2)}, {vr(UP(2)+2*k, 2)}, {vr(UP(3)+2*k, 2)}')
        for k in range(3):
            a(f'v_pk_add_f32 {vr(UP(0)+2*k, 2)}, {vr(UP(0)+2*k, 2)}, {vr(UP(2)+2*k, 2)}')
        for sh in (2, 4, 8):
            for k in range(6):
                a(f'v_add_f32_dpp v{ACC(1)+k}, v{ACC(1)+k}, v{ACC(1)+k} row_ror:{sh} row_mask:0xf bank_mask:0xf')
        for k in range(6):
            a(f'v_mov_b32 v{D(0)+k}, v{ACC(0)+k}')
        for k in range(6):
            a(f'v_permlane32_swap_b32 v{ACC(0)+k}, v{D(0)+k}')
        for k in range(6):
            a(f'v_add_f32 v{ACC(0)+k}, v{ACC(0)+k}, v{D(0)+k}')
        for k in range(12):
            a(f'v_mov_b32 v{D(0)+k}, v{ACC(0)+k}')
        for k in range(12):
            a(f'v_permlane16_swap_b32 v{ACC(0)+k}, v{D(0)+k}')
        for k in range(12):
            a(f'v_add_f32 v{ACC(0)+k}, v{ACC(0)+k}, v{D(0)+k}')
        for k in range(3):
            a(f'v_cvt_pk_bf16_f32 v{OUT+k}, v{ACC(1)+2*k}, v{ACC(1)+2*k+1}')
        xt, xc, xo = a.uniq('L_x2p'), a.uniq('L_x2c'), a.uniq('L_x2o')
        a(f's_mov_b64 exec, 15\ns_mov_b32 s{S_SPIN}, 0\ns_branch {xc}')
        a.label(xt)
        a(f'buffer_load_dword v251, v250, s[{SRDW}:{SRDW+3}], s{S_X2} offen sc1\ns_waitcnt vmcnt(0)')
        a.label(xc)
        a(f'v_xor_b32 v251, s{S_TAG}, v251\nv_cmp_le_u32 vcc, 16, v251\ns_cbranch_vccz {xo}')
        self.spin_check(xt, xo)
        a.label(xo)
        a(f'v_cmp_ne_u32 vcc, s{S_XCC}, v251\ns_mov_b64 exec, 0xffff')
        for k in range(3):
            a(f'v_cvt_pk_bf16_f32 v{OUT+k}, v{ACC(0)+2*k}, v{ACC(0)+2*k+1}')
        sl, go = a.uniq('L_s2s'), a.uniq('L_s2g')
        a(f's_mul_i32 s{S_T0}, s{S_I4}, 1152\ns_add_u32 s{S_T0}, s{S_T0}, s{S_S2}\ns_mov_b64 exec, 0x3ffff')
        a(f's_cbranch_vccnz {sl}' if self.o['fast'] else f's_branch {sl}')
        a(f'buffer_store_dwordx4 {vr(OUT, 4)}, v{vS2}, s[{SRDW}:{SRDW+3}], s{S_T0} offen\ns_branch {go}')
        a.label(sl)
        a(f'buffer_store_dwordx4 {vr(OUT, 4)}, v{vS2}, s[{SRDW}:{SRDW+3}], s{S_T0} offen sc1')
        a.label(go)
        for k in range(3):
            a(f'ds_write_b32 v{vK1}, v{OUT+k} offset:{4*k}')
        top, ok = a.uniq('L_g2'), a.uniq('L_g2ok')
        a(f's_cmp_eq_u32 s{S_W}, 3\ns_cselect_b32 exec_lo, 0x3ffff, -1\ns_cselect_b32 exec_hi, 0, -1\ns_mov_b32 s{S_SPIN}, 0')
        a.label(top)
        a(f'buffer_load_dwordx4 {vr(D(0), 4)}, v{vG3}, s[{SRDW}:{SRDW+3}], s{S_S2} offen sc1\ns_waitcnt vmcnt(0)')
        a(f'v_cmp_ne_u32 vcc, s{S_TAG}, v{D(0)+3}\ns_cbranch_vccz {ok}')
        self.spin_check(top, ok)
        a.label(ok)
        for k in range(3):
            a(f'ds_write_b32 v{vK3}, v{D(0)+k} offset:{4*k}')
        a('s_mov_b64 exec, -1\ns_waitcnt lgkmcnt(0)')

    def slot_warm(self, nlines, wave):
        if not self.o.get('sw', True):
            return
        a = self.a
        L = a.uniq('L_sw')
        a(f's_cmp_lg_u32 s{S_W}, {wave}\ns_cbranch_scc1 {L}\nv_lshlrev_b32 v252, 7, v0')
        self.execmask((1 << nlines) - 1)
        a(f'buffer_load_dword v255, v252, s[{SRDW}:{SRDW+3}], s{S_KVO} offen\ns_mov_b64 exec, -1')
        a.label(L)

    def lds_signal(self, k, vt):
        a = self.a
        a(f'v_mov_b32 v{vt}, {self.A_CNT+4*k}\nv_mov_b32 v{vt+1}, 1\ns_mov_b64 exec, 1\nds_add_u32 v{vt}, v{vt+1}\ns_mov_b64 exec, -1')

    def lds_wait(self, k, vt, n=4):
        a = self.a
        top, ok = a.uniq('L_lw'), a.uniq('L_lwok')
        a(f'v_mov_b32 v{vt}, {self.A_CNT+4*k}\ns_mov_b32 s{S_SPIN}, 0')
        a.label(top)
        a(f'ds_read_b32 v{vt+1}, v{vt}\ns_waitcnt lgkmcnt(0)\nv_readfirstlane_b32 s{S_T4}, v{vt+1}\ns_cmp_ge_u32 s{S_T4}, {n}\ns_cbranch_scc1 {ok}')
        a(f's_add_u32 s{S_SPIN}, s{S_SPIN}, 1\ns_cmp_lt_u32 s{S_SPIN}, {SPIN*8}\ns_cbranch_scc1 {top}')
        a.label(ok)

    def a_phi(self, acc, j, dst):
        a = self.a
        T, VC = 240, 4
        for rb in range(2):
            A, t = acc(j, rb), T + 4 * rb
            for h in range(2):
                a(f'v_pk_fma_f32 {vr(t+2*h, 2)}, {vr(A+2*h, 2)}, {vr(VC, 2)}, {vr(VC, 2)} op_sel:[0,0,1] op_sel_hi:[1,0,1]')
        for rb in range(2):
            A, t = acc(j, rb), T + 4 * rb
            for r in range(4):
                a(f'v_exp_f32_e64 v{t+r}, v{t+r} clamp\nv_max_f32 v{A+r}, v{A+r}, v{VC+2}')
        for rb in range(2):
            A, t = acc(j, rb), T + 4 * rb
            for h in range(2):
                a(f'v_pk_add_f32 {vr(A+2*h, 2)}, {vr(A+2*h, 2)}, {vr(t+2*h, 2)}')
        for rb in range(2):
            A = acc(j, rb)
            for h in range(2):
                a(f'v_cvt_pk_bf16_f32 v{dst(rb, h)}, v{A+2*h}, v{A+2*h+1}')

    def wo_rounds(self, VP, n0, n1):
        if n1 <= n0:
            return
        a = self.a
        Lw = a.uniq('L_wo')
        a(f's_mov_b32 s{S_CNT}, {n0}')
        a.label(Lw)
        a(f's_add_u32 s{S_T3}, s{S_CNT}, s{S_I4}\ns_cmp_ge_u32 s{S_T3}, 5\ns_cselect_b32 s{S_T0}, 5, 0\ns_sub_u32 s{S_T3}, s{S_T3}, s{S_T0}')
        a(f's_lshl_b32 s{S_T3}, s{S_T3}, 2\ns_add_u32 s{S_T3}, s{S_T3}, s{S_W}')
        a(f's_mul_i32 s{S_T0}, s{S_T3}, {32*1280}\ns_mul_i32 s{S_T1}, s{S_T3}, 5120')
        for n in range(5):
            a(f's_add_u32 m0, s{S_T1}, {self.A_WO+1024*n}\nbuffer_load_dwordx4 v{VP+n}, s[{SRD1}:{SRD1+3}], s{S_T0} offen lds')
        a(f's_add_u32 s{S_CNT}, s{S_CNT}, 1\ns_cmp_lt_u32 s{S_CNT}, {n1}\ns_cbranch_scc1 {Lw}')

    def smem_touch(self, n):
        a = self.a
        for i in range(n):
            a(f's_load_dwordx2 s[{96+2*(i & 1)}:{97+2*(i & 1)}], s[94:95], {128*i+60}')
        a(f's_add_u32 s94, s94, {128*n}\ns_addc_u32 s95, s95, 0')

    def loader_loop(self, issue, per, sm=0, smn=9):
        a = self.a
        Lp = a.uniq('L_ld')
        a(f's_mov_b32 s{S_CNT}, 1')
        a.label(Lp)
        issue()
        if sm:
            Ls = a.uniq('L_nsm')
            a(f's_cmp_gt_u32 s{S_CNT}, {smn}\ns_cbranch_scc1 {Ls}')
            self.smem_touch(sm)
            a.label(Ls)
        a(f's_add_u32 s{S_CNT}, s{S_CNT}, 1')
        self.stamp((S_CNT, 10))
        a(f's_waitcnt vmcnt({per})')
        self.stamp((S_CNT, 25))
        a('s_barrier')
        self.stamp((S_CNT, 40))
        a(f's_cmp_lt_u32 s{S_CNT}, 10\ns_cbranch_scc1 {Lp}')

    def a_loader(self):
        a = self.a
        acc = lambda j, rb: 8 + 4 * (2 * j + rb)
        VC, WR, VX, VW, VP, XS = 4, 48, 80, 84, 89, 96
        slot = lambda c: self.A_R0 + self.A_SLOT * ((c + 1) % 3)
        a.label('L_AL')
        self.x_offsets(VX, False)
        self.start_chunk(S_KC)
        a(f's_lshl_b32 s{S_M+4}, s{S_W}, 12\ns_mul_i32 s{S_M+5}, s{S_W}, 5120\ns_lshr_b32 s{S_T0}, s{S_W}, 1\ns_add_u32 s{S_M+6}, s{S_KC}, s{S_T0}')
        a(f's_lshl_b32 s{S_T0}, s{S_T0}, 5\ns_and_b32 s{S_T1}, s{S_W}, 1\ns_lshl_b32 s{S_T1}, s{S_T1}, 2')
        a(f's_add_u32 s{S_T0}, s{S_T0}, s{S_T1}\ns_mul_i32 s{S_T0}, s{S_T0}, 3840\ns_mul_i32 s{S_T1}, s{S_G}, 160\ns_add_u32 s{S_T5}, s{S_T0}, s{S_T1}\ns_add_u32 s{S_T5}, s{S_T5}, 1280')
        a(f's_movk_i32 s{S_M}, 3840\ns_movk_i32 s{S_T4}, 1120')

        def woff(n):
            a(f'v_add_u32 v250, {64*n}, v0\nv_mul_u32_u24 v251, 3277, v250\nv_lshrrev_b32 v251, 16, v251')
            a('v_mul_u32_u24 v252, 20, v251\nv_sub_u32 v252, v250, v252\nv_lshrrev_b32 v253, 1, v251\nv_and_b32 v253, 2, v253\nv_xor_b32 v252, v252, v253')
            a('v_mul_u32_u24 v253, 26, v252\nv_lshrrev_b32 v253, 8, v253')
            a('v_and_b32 v250, -4, v251\nv_add_u32 v251, v251, v250')
            a(f'v_lshlrev_b32 v252, 4, v252\nv_mad_u32_u24 v252, v253, s{S_T4}, v252\nv_mad_u32_u24 v252, v251, s{S_M}, v252')
            a(f'v_add_u32 v{VW+n}, s{S_T5}, v252')

        def issue(c):
            a(f's_lshl_b32 s{S_T0}, s{S_KC}, 7\ns_mul_i32 s{S_T1}, s{S_KC}, 245760')
            if c == 0:
                woff(0)
                woff(1)
                a('s_waitcnt lgkmcnt(0)')
                self.srd(SRD0, P_AX, 2048 * 1280)
                self.srd(SRD1, P_WQKV, 640 * 3840)
                self.stamp(1)
            for n in range(4):
                a(f's_add_u32 m0, s{S_M+4}, {slot(c)+1024*n}\nbuffer_load_dwordx4 v{VX+n}, s[{SRD0}:{SRD0+3}], s{S_T0} offen lds')
            for n in range(5):
                if c == 0 and n >= 2:
                    woff(n)
                a(f's_add_u32 m0, s{S_M+5}, {slot(c)+16384+1024*n}\nbuffer_load_dwordx4 v{VW+n}, s[{SRD1}:{SRD1+3}], s{S_T1} offen lds')
            self.next_kc()
        issue(0)
        self.load_epoch()
        self.srd(SRDW, P_WS, WS_SIZE)
        issue(1)
        a('v_and_b32 v250, 15, v0\nv_lshrrev_b32 v251, 4, v0\nv_lshrrev_b32 v252, 1, v250\nv_xor_b32 v252, v252, v251')
        a(f's_add_u32 s{S_T0}, s{S_M+4}, {slot(0)}\nv_lshlrev_b32 v252, 4, v252\nv_lshl_add_u32 v252, v250, 7, v252\nv_add_u32 v1, s{S_T0}, v252\nv_xor_b32 v2, 64, v1')
        a('v_lshrrev_b32 v252, 2, v0\nv_mul_u32_u24 v252, 160, v252\nv_and_b32 v253, 3, v0\nv_lshl_add_u32 v3, v253, 3, v252')
        a(f's_mul_i32 s{S_T0}, s{S_G}, 160\ns_and_b32 s{S_T1}, s{S_W}, 1\ns_mul_i32 s{S_T1}, s{S_T1}, {32*3840}\ns_add_u32 s{S_T0}, s{S_T0}, s{S_T1}')
        for n in range(5):
            a(f'v_add_u32 v250, {64*n}, v0')
            self.div10(251, 252, 250)
            a('v_bfe_u32 v253, v251, 2, 2\nv_lshlrev_b32 v253, 3, v253\nv_and_b32 v250, 3, v251\nv_add_u32 v253, v253, v250\nv_lshrrev_b32 v251, 4, v251\nv_lshl_add_u32 v253, v251, 2, v253')
            a(f'v_mul_u32_u24 v253, 3840, v253\nv_lshl_add_u32 v253, v252, 4, v253\nv_add_u32 v{VP+n}, s{S_T0}, v253')
        a(f'v_mov_b32 v{VC}, {f2u(LOG2E):#x}\nv_mov_b32 v{VC+1}, {f2u(-1e-6*LOG2E):#x}\nv_mov_b32 v{VC+2}, {f2u(1e-6):#x}')
        for r in range(40):
            a(f'v_mov_b32 v{8+r}, v{VC+2}')
        a(f's_lshl_b32 s{S_BASE}, s{S_CH}, 2\ns_add_u32 s{S_BASE}, s{S_BASE}, s{S_W}\ns_mul_i32 s{S_BASE}, s{S_BASE}, 40960\ns_add_u32 s{S_BASE}, s{S_BASE}, {WS_O}')

        def wq_round(r):
            o = [f's_xor_b32 s{S_T1}, s{S_M+7}, {r}' if r < 4 else f's_mov_b32 s{S_T1}, 4',
                 f's_lshl_b32 s{S_T0}, s{S_T1}, 1', f's_add_u32 s{S_T0}, s{S_T0}, s{S_M+6}', f's_cmp_ge_u32 s{S_T0}, 10', f's_cselect_b32 s{S_T2}, 10, 0',
                 f's_sub_u32 s{S_T0}, s{S_T0}, s{S_T2}', f's_mul_i32 s{S_T0}, s{S_T0}, 245760',
                 f's_mul_i32 s{S_T1}, s{S_T1}, 20480', f's_add_u32 s{S_T1}, s{S_T1}, s{S_M+5}']
            for n in range(5):
                o += [f's_add_u32 m0, s{S_T1}, {1024*n}', 's_nop 0', f'buffer_load_dwordx4 v{VP+n}, s[{SRD1}:{SRD1+3}], s{S_T0} offen lds']
            return o
        a(f's_cmp_ge_u32 s{S_M+6}, 10\ns_cselect_b32 s{S_T0}, 10, 0\ns_sub_u32 s{S_M+6}, s{S_M+6}, s{S_T0}')
        a(f's_lshr_b32 s{S_M+7}, s{S_I4}, 1' if self.o.get('qswap', True) else f's_mov_b32 s{S_M+7}, 0')
        def prewarm(vd=95):
            if not self.o['prewarm']:
                return 0
            a(f's_mul_i32 s{S_T0}, s{S_G}, 5120\ns_add_u32 s{S_T0}, s{S_T0}, s{S_BASE}\nv_lshlrev_b32 v94, 7, v0')
            self.execmask((1 << 40) - 1)
            a(f'buffer_load_dword v{vd}, v94, s[{SRDW}:{SRDW+3}], s{S_T0} offen sc1\ns_mov_b64 exec, -1')
            return 1
        a('s_waitcnt vmcnt(9) lgkmcnt(0)')
        self.make_tag()
        a('s_barrier')
        for k in range(10):
            for ks in range(2):
                for rb in range(2):
                    a(f'ds_read_b128 {vr(XS+16*k+8*ks+4*rb, 4)}, v{1+ks} offset:{2048*rb}')
            if k == 9:
                break
            d = (slot(k + 1) - slot(k)) & 0xffffffff
            if k < 8:
                if self.o.get('pwa', 'g') == str(k):
                    prewarm()
                issue(k + 2)
                ny = 9
            else:
                ny = 5
                if self.o.get('pwa', 'g') == 'b8':
                    ny += prewarm()
                a('\n'.join(wq_round(0)))
            a(f'v_add_u32 v1, {d:#x}, v1\nv_add_u32 v2, {d:#x}, v2')
            a(f's_waitcnt vmcnt({ny}) lgkmcnt(0)\ns_barrier')
        self.stamp(2)
        a('s_waitcnt lgkmcnt(0)')
        self.lds_signal(0, 82)
        self.publish_xcc(80)
        qmode = self.o.get('qmode', 'a')
        a('\n'.join(wq_round(1) + wq_round(2) + (wq_round(3) if qmode != 'c' else [])))
        if qmode == 'a':
            self.lds_wait(0, 80, 8)
            a('\n'.join(wq_round(4)))
        a(f'v_add_u32 v2, 51200, v3\ns_waitcnt vmcnt({dict(a=15, b=10, c=5)[qmode]}) lgkmcnt(0)')
        self.lds_signal(1, 80)
        if qmode == 'b':
            self.lds_wait(0, 80, 8)
            self.lds_wait(1, 80)
            a('\n'.join(wq_round(4)))
        else:
            self.lds_wait(1, 80)
        self.stamp(3)

        def gemm(c0, c1, extra={}):
            q = Cnt(a, 'lgkmcnt', 15)
            LEAD = 6
            seq = [(kk, j) for kk in range(2 * c0, 2 * c1) for j in range(5)]

            def rd(m):
                if m < len(seq):
                    kk, j = seq[m]
                    for t in range(2):
                        a(f'ds_read_b64_tr_b16 {vr(WR+4*(m % 8)+2*t, 2)}, v{3 if kk < 10 else 2} offset:{5120*(kk % 10)+2560*t+32*j}')
                        q.issue(m)
            for m in range(LEAD):
                rd(m)
            start = len(a.lines)
            for m, (kk, j) in enumerate(seq):
                if m % 2 == 0:
                    q.wait(min(m + 1, len(seq) - 1))
                for rb in range(2):
                    d = vr(acc(j, rb), 4)
                    a(f'v_mfma_f32_16x16x32_bf16 {d}, {vr(WR+4*(m % 8), 4)}, {vr(XS+8*kk+4*rb, 4)}, {d}')
                rd(m + LEAD)
                for x in extra.get(m, []):
                    a(x)
            body = a.lines[start:]
            del a.lines[start:]
            a.lines += spread(body, tail=0)
        if qmode == 'c':
            self.lds_wait(0, 80, 8)
            r3 = wq_round(3) + wq_round(4)
            gemm(0, 4, {0: r3[:9], 2: r3[9:12], 3: r3[12:15], 4: r3[15:18], 5: r3[18:21], 6: r3[21:24], 8: r3[24:33],
                        10: r3[33:36], 11: r3[36:39], 12: r3[39:42], 13: r3[42:45], 14: r3[45:48]})
        else:
            gemm(0, 4)
        a('s_waitcnt vmcnt(5)')
        self.lds_signal(2, 80)
        self.lds_wait(2, 80)
        if self.o.get('pwa', 'g') == 'm':
            prewarm()
        gemm(4, 8)
        a(f's_waitcnt vmcnt({1 if self.o.get("pwa") == "m" and self.o["prewarm"] else 0})')
        self.lds_signal(3, 80)
        self.lds_wait(3, 80)
        gemm(8, 10)
        self.lds_signal(4, 80)
        self.stamp(4)
        if self.o.get('pwa', 'g') == 'g':
            prewarm(120)
        self.srd(SRD1, P_WO, 640 * 1280)
        self.period_offsets(VP)
        self.lds_wait(4, 80)
        self.wo_rounds(VP, 0, self.o['na1'])
        self.xcc_issue(250)
        self.stamp(13)
        vKR, vZR, vWO, vL16, vOUT = 207, 208, 209, 213, 214
        PQ = lambda rb, p: 48 + 12 * rb + 4 * p
        for j in range(5):
            self.a_phi(acc, j, lambda rb, h: PQ(rb, j // 2) + 2 * (j & 1) + h)
        for rb in range(2):
            a(f'v_mov_b64 {vr(PQ(rb, 2)+2, 2)}, 0')
        OP = 72
        if self.o.get('pwa') == 'm':
            a(f's_waitcnt vmcnt({5*self.o["na1"]+2})')
        for r in range(0, 48, 2):
            a(f'v_mov_b64 {vr(OP+r, 2)}, 0')
        DEN = lambda rb: 8 + 4 * rb
        NUM = lambda j, rb: 128 + 4 * (2 * j + rb)
        for rb in range(2):
            for r in range(4):
                a(f'v_mov_b32 v{DEN(rb)+r}, v{VC+2}')
        a('v_and_b32 v246, 15, v0\nv_lshrrev_b32 v247, 4, v0')
        a(f'v_lshlrev_b32 v247, 3, v247\nv_add_u32 v247, {self.A_KVB}, v247\nv_mul_u32_u24 v253, 40, v246\nv_add_u32 v{vKR}, v247, v253')
        a(f'v_and_b32 v253, 3, v246\nv_mul_u32_u24 v253, 800, v253\nv_add_u32 v{vZR}, v247, v253')
        a(f'v_add_u32 v{vWO}, {self.A_WO}, v3\nv_lshlrev_b32 v{vL16}, 4, v0')
        self.out_prepare(vOUT, 0)
        a(f's_mov_b64 s[{S_M}:{S_M+1}], 0xffff\ns_mov_b32 s{S_M+2}, -1\ns_mov_b32 s{S_M+3}, 0\ns_mov_b32 s{S_M+4}, -1\ns_mov_b32 s{S_M+5}, 0xffff')
        a(f's_mul_i32 s{S_T2}, s{S_G}, 5120\ns_add_u32 s{S_T2}, s{S_T2}, s{S_BASE}')
        self.stamp(5)
        a('s_barrier')
        self.stamp(10)
        ops = {}
        oplist = [(0, 0), (1, 0), (1, 1), (2, 0), (2, 1), (3, 1), (3, 2), (4, 1), (4, 2), ('z', 0), ('z', 1), ('z', 2)]
        oplist = oplist[9:] + oplist[:9]
        for n, (j, p) in enumerate(oplist):
            ops[(j, p)] = OP + 4 * n
            for t in range(2):
                b = 2 * p + t
                if j == 'z':
                    if b < 5:
                        self.execmask(sum(1 << (16*g+i) for g in range(4) for i in range(16) if (i & 3) == head(16*b+4*g)))
                        a(f'ds_read_b64 {vr(OP+4*n+2*t, 2)}, v{vZR} offset:{800+32*b}')
                elif (j, b) in pieces:
                    self.execmask(kvmask(j, b))
                    a(f'ds_read_b64 {vr(OP+4*n+2*t, 2)}, v{vKR} offset:{640*j+32*b}')
        a('s_mov_b64 exec, -1')
        a('s_waitcnt lgkmcnt(13)')
        for p in range(3):
            for rb in range(2):
                d = vr(DEN(rb), 4)
                a(f'v_mfma_f32_16x16x32_bf16 {d}, {vr(ops[("z", p)], 4)}, {vr(PQ(rb, p), 4)}, {d}')
        a('s_waitcnt lgkmcnt(0)')
        for j in range(5):
            ps = [p for (jj, p) in oplist if jj == j]
            for k, p in enumerate(ps):
                for rb in range(2):
                    d = vr(NUM(j, rb), 4)
                    a(f'v_mfma_f32_16x16x32_bf16 {d}, {vr(ops[(j, p)], 4)}, {vr(PQ(rb, p), 4)}, ' + ('0' if k == 0 else d))
        RC = lambda rb, j: 16 + 6 * rb + j
        for rb in range(2):
            for r in range(4):
                a(f'v_rcp_f32 v{DEN(rb)+r}, v{DEN(rb)+r}')
        for rb in range(2):
            a(f'v_mov_b32 v{RC(rb, 0)}, v{DEN(rb)}\nv_mov_b32 v{RC(rb, 4)}, v{DEN(rb)+3}')
            for j in range(1, 4):
                a(f'v_cndmask_b32 v{RC(rb, j)}, v{DEN(rb)+j}, v{DEN(rb)+j-1}, s[{S_M+2*(j-1)}:{S_M+2*(j-1)+1}]')
        OF = 28
        ofreg = lambda j, rb: OF + (4 * (2 * (j // 2) + rb) + 2 * (j & 1) if j < 4 else 16 + 2 * rb)
        for j in range(5):
            for rb in range(2):
                N = NUM(j, rb)
                rc = RC(rb, j)
                sel = 'op_sel:[0,1] op_sel_hi:[1,1]' if rc & 1 else 'op_sel:[0,0] op_sel_hi:[1,0]'
                for h in range(2):
                    a(f'v_pk_mul_f32 {vr(N+2*h, 2)}, {vr(N+2*h, 2)}, {vr(rc & ~1, 2)} {sel}')
            for rb in range(2):
                N = NUM(j, rb)
                for h in range(2):
                    a(f'v_cvt_pk_bf16_f32 v{ofreg(j, rb)+h}, v{N+2*h}, v{N+2*h+1}')
            if j in (1, 3):
                for rb in range(2):
                    f = 2 * (j // 2) + rb
                    a(f'buffer_store_dwordx4 {vr(OF+4*f, 4)}, v{vL16}, s[{SRDW}:{SRDW+3}], s{S_T2} offen offset:{1024*f} {self.ix}')
            if j == 4:
                a(f's_add_u32 s{S_T2}, s{S_T2}, 4096\nbuffer_store_dwordx4 {vr(OF+16, 4)}, v{vL16}, s[{SRDW}:{SRDW+3}], s{S_T2} offen {self.ix}')
        self.stamp(6)
        for u in range(8):
            a(f's_xor_b32 s{S_T0}, s{S_G}, {u}\ns_mul_i32 s{4+u}, s{S_T0}, 5120\ns_add_u32 s{4+u}, s{4+u}, s{S_BASE}')
            a(f's_mul_i32 s{S_T0}, s{S_T0}, 12800\nv_add_u32 v{8+u}, s{S_T0}, v{vWO}')
        a(f'v_add_u32 v1, 4096, v{vL16}')
        self.out_soffsets()
        self.xcc_eval(250)
        lab = self.hop2(250)
        a('s_mov_b64 exec, -1')
        acc2 = lambda j, rb: 52 + 4 * (2 * j + rb)
        WR2 = 132
        q = Cnt(a, 'lgkmcnt', 15)
        vq = Cnt(a, 'vmcnt', 63)
        LEAD = 7
        rs = int(self.o.get('rs', 0)) if not self.o['wt'] else 0
        pool = list(range(116, 132, 4)) + list(range(172, 204, 4)) + list(range(216, 244, 4)) + list(range(16, 28, 4))
        if rs:
            a(f'v_mov_b64 v[244:245], {vr(OF+16, 2)}\nv_mov_b64 v[246:247], {vr(OF+18, 2)}')
            pool += pool[:6]
        else:
            pool += list(range(28, 44, 4))
            pool += pool[:2]
        areg = {(0, f): OF + 4 * f for f in range(5)}
        loads = []
        steps = []
        for p in range(4):
            ua, ub = 2 * p, 2 * p + 1
            for u in (ua, ub):
                for h in range(2):
                    steps.append((((u, 2 * h), (u, 2 * h + 1)), ((u, 2 * h), (u, 2 * h + 1))))
                    if u:
                        for f in (2 * h, 2 * h + 1):
                            areg[(u, f)] = pool.pop(0)
                            loads.append((u, f))
            steps.append((((ua, 4), (ub, 4)), ((ua, 4), (ub, 4))))
            if p == 0:
                areg[(1, 4)] = 48
                loads.append((1, 4))
            else:
                areg[(ua, 4)], areg[(ub, 4)] = 92 + 8 * (p - 1), 96 + 8 * (p - 1)
                loads += [(ua, 4), (ub, 4)]
        tail = self.o.get('tail', True)
        seq = [(ks, j) for ks in range(15) for j in range(5)]
        seq += [(ks, j) for j in range(5) for ks in range(15, 20)] if tail else [(ks, j) for ks in range(15, 20) for j in range(5)]

        def rd_w(m):
            if m >= len(seq):
                return
            ks, j = seq[m]
            for t in range(2):
                u, blk = steps[ks][1][t]
                a(f'ds_read_b64_tr_b16 {vr(WR2+4*(m % 10)+2*t, 2)}, v{8+u} offset:{2560*blk+32*j}')
                q.issue(m)

        def ld_o():
            if loads:
                u, f = loads.pop(0)
                a(f'buffer_load_dwordx4 {vr(areg[(u, f)], 4)}, v{1 if f == 4 else vL16}, s[{SRDW}:{SRDW+3}], s{4+u} offen offset:{1024*(f & 3)} sc1')
                vq.issue((u, f))
        self.stamp(11)
        a('s_barrier')
        self.stamp(12)
        for m in range(LEAD):
            rd_w(m)
        swapped = set()
        pend = []
        pa = int(self.o.get('pa', 0))
        for (m0, m1, second) in ((0, pa, 0), (pa, 100, 1)):
            start = len(a.lines)
            for m in range(m0, m1):
                ks, j = seq[m]
                fr = steps[ks][0]
                for f in fr:
                    if f[0]:
                        vq.wait(f)
                if m + 2 < 100 and seq[m + 2][0] % 5 == 4 and seq[m + 2][0] not in swapped:
                    k4 = seq[m + 2][0]
                    swapped.add(k4)
                    vq.wait(steps[k4][0][1])
                    r = areg[steps[k4][0][0]]
                    a(f'v_swap_b32 v{r+2}, v{r+4}\nv_swap_b32 v{r+3}, v{r+5}')
                if m % 2 == 0 or m == m0:
                    q.wait(min(m + 1 - (m & 1), 99))
                for rb in range(2):
                    d = vr(acc2(j, rb), 4)
                    a(f'v_mfma_f32_16x16x32_bf16 {d}, {vr(areg[fr[rb]], 4)}, {vr(WR2+4*(m % 10), 4)}, ' + ('0' if ks == 0 else d))
                rd_w(m + LEAD)
                if second and m % 2 == 1:
                    ld_o()
                if m == 36 and self.o.get('wos', False) and not self.o.get('two'):
                    a('s_barrier')
                if rs and rs <= m < rs + 5:
                    f = m - rs
                    a(f'buffer_store_dwordx4 {vr(OF+4*f if f < 4 else 244, 4)}, v{1 if f == 4 else vL16}, s[{SRDW}:{SRDW+3}], s4 offen offset:{1024*(f & 3)} sc1')
                    vq.issue('rs')
                if tail and m >= 75:
                    if m >= 82 or (m - 75) % 5 >= 2:
                        for _ in range(3 if len(pend) > 2 else 2):
                            if pend and (m - 75) % 5 >= 2:
                                a(pend.pop(0))
                    if (m - 75) % 5 == 4:
                        pend += self.out_block(acc2, vOUT, j)
            body = a.lines[start:]
            del a.lines[start:]
            a.lines += spread(body, tail=0) if body else []
            if not second:
                self.hop2_wait(250, lab)
                self.stamp(7)
                for _ in range(int(self.o.get('pl', 6))):
                    ld_o()
        assert not loads
        self.stamp(8)
        if tail:
            a('\n'.join(pend))
        else:
            self.out_stores(acc2, vOUT)
        if self.o['stamps'] or self.o.get('probe'):
            self.stamp(14)
            a('s_waitcnt vmcnt(0)')
        self.epoch_update(0)
        self.end_write_back()
        self.finish()

    def a_compute(self):
        a = self.a
        acc = lambda j, rb: 8 + 4 * (2 * j + rb)
        XF, WR = 128, 144
        vXA, vWA = 1, 8
        VC = 4
        a.label('L_AC')
        R1 = self.A_R0 + self.A_SLOT
        a('v_and_b32 v250, 15, v0\nv_lshrrev_b32 v251, 4, v0\nv_lshrrev_b32 v252, 1, v250\nv_xor_b32 v252, v252, v251')
        a(f's_lshl_b32 s{S_T0}, s{S_W}, 12\ns_add_u32 s{S_T0}, s{S_T0}, {R1}\nv_lshlrev_b32 v252, 4, v252\nv_lshl_add_u32 v252, v250, 7, v252\nv_add_u32 v{vXA}, s{S_T0}, v252')
        a(f'v_xor_b32 v{vXA+1}, 64, v{vXA}')
        a('v_lshrrev_b32 v252, 2, v0\nv_mul_u32_u24 v252, 320, v252\nv_and_b32 v253, 3, v0\nv_lshl_add_u32 v252, v253, 3, v252')
        a(f'v_add_u32 v252, {R1+16384}, v252\nv_and_b32 v253, 1, v251\nv_lshlrev_b32 v253, 5, v253\nv_add_u32 v{vWA}, v252, v253\nv_sub_u32 v{vWA+1}, v252, v253')
        a(f'v_mov_b32 v{VC}, {f2u(LOG2E):#x}\nv_mov_b32 v{VC+1}, {f2u(-1e-6*LOG2E):#x}\nv_mov_b32 v{VC+2}, {f2u(1e-6):#x}')
        for j in range(5, 15):
            for rb in range(2):
                for r in range(4):
                    a(f'v_mov_b32 v{acc(j, rb)+r}, ' + (f'v{VC+2}' if j < 10 else '0'))
        a(f'v_lshlrev_b32 v252, 2, v0\nv_add_u32 v252, {self.A_CNT}, v252\nv_mov_b32 v253, 0\nds_write_b32 v252, v253')
        ZB, vWA0, VP, vPOS = 216, 184, 10, 16
        zmask = 0x01f001f001f001f0
        groups = [[(0, 0)], [(1, 1)], [(2, 2)], [(1, 2), (3, 2)], [(3, 3)], [(0, 1), (4, 3)], [(2, 1), (2, 3)], [(4, 4)], [(1, 0), (3, 4), 'z']]
        mregs = {}
        a(f's_mul_i32 s{S_T0}, s{S_W}, 6720\ns_add_u32 s{S_T0}, s{S_T0}, {self.A_PART}\nv_lshlrev_b32 v252, 4, v251\nv_add_u32 v252, s{S_T0}, v252')
        a(f'v_mul_u32_u24 v253, 80, v250\nv_add_u32 v205, v252, v253')
        a(f'v_add_u32 v254, -4, v250\nv_lshlrev_b32 v253, 2, v254\nv_add_u32 v253, v253, v251\nv_mul_u32_u24 v253, 52, v253\nv_lshrrev_b32 v253, 8, v253')
        a(f'v_mul_u32_u24 v253, 1600, v253\nv_lshl_add_u32 v253, v254, 6, v253\nv_add_u32 v253, 1600, v253\nv_add_u32 v206, v252, v253')
        for n, grp in enumerate(groups):
            a(f'v_lshlrev_b32 v{vWA0+n}, 4, v0\nv_add_u32 v{vWA0+n}, {self.A_KVB}, v{vWA0+n}')
            for k, p in enumerate(grp):
                m = zmask if p == 'z' else kvmask(*p)
                if k:
                    mregs[p] = (94, 96, 98, 100, S_M + 6)[len(mregs)]
                    a(f's_mov_b32 s{mregs[p]}, {m & 0xffffffff:#x}\ns_mov_b32 s{mregs[p]+1}, {m >> 32:#x}')
                self.execmask(m)
                if p == 'z':
                    a(f'v_mov_b32 v{vWA0+n}, v206')
                else:
                    a(f'v_add_u32 v{vWA0+n}, {1280*p[0]+64*p[1]}, v205')
                a('s_mov_b64 exec, -1')
        a('v_mov_b32 v253, 0x3f803f80')
        for b in range(5):
            a(f'v_cmp_eq_u32 vcc, {b+4}, v250\nv_cndmask_b32 v{ZB+4*b}, 0, v253, vcc')
            for r in range(1, 4):
                a(f'v_mov_b32 v{ZB+4*b+r}, v{ZB+4*b}')
        for h, code in enumerate((f's_lshl_b32 s{S_T0}, s{S_W}, 6', f's_mul_i32 s{S_T0}, s{S_W}, 6\ns_add_u32 s{S_T0}, s{S_T0}, 256')):
            vp = vPOS + 3 * h
            a(code + f'\nv_add_u32 v{vp}, s{S_T0}, v0\nv_mul_u32_u24 v{vp+1}, 24, v{vp}\nv_add_u32 v{vp+1}, {self.A_PART}, v{vp+1}')
            a(f'v_mul_u32_u24 v{vp+2}, 12, v{vp}\nv_add_u32 v{vp+2}, {self.A_KVB}, v{vp+2}\nv_lshlrev_b32 v{vp}, 4, v{vp}')
        a(f's_mul_i32 s{S_KVG}, s{S_G}, {16*4480}\ns_add_u32 s{S_KVG}, s{S_KVG}, {WS_KVP}\ns_mul_i32 s{S_KVO}, s{S_CH}, 4480\ns_add_u32 s{S_KVO}, s{S_KVO}, s{S_KVG}')
        self.g2_setup()
        self.period_offsets(VP)
        a('s_waitcnt lgkmcnt(0)')
        self.load_epoch()
        self.srd(SRDW, P_WS, WS_SIZE)
        self.srd(SRD1, P_WO, 640 * 1280)
        self.tlb_touch(WS_O, 40960, [P_WO])
        a(f's_cmp_lg_u32 s{S_W}, 0\ns_cbranch_scc1 L_ac_nopf')
        self.code_prefetch('L_AL', 'L_BL')
        a.label('L_ac_nopf')
        a('s_waitcnt lgkmcnt(0)')
        self.make_tag()
        self.g2_early()
        self.slot_warm(35, 2)

        def wread(n, reg):
            ks, j = divmod(n, 10)
            for t in range(2):
                a(f'ds_read_b64_tr_b16 {vr(reg+2*t, 2)}, v{vWA+(j & 1)} offset:{(32*ks+16*t)*320+32*j}')
            return 2
        self.mainloop(10, lambda j, rb: acc(5 + j, rb), XF, WR, vXA, [vWA, vWA + 1], wread, lambda j: False, self.A_SLOT, 3, True, slot0=1)
        self.stamp(2)
        self.lds_signal(0, 250)
        PK, VF, ZD = 128, 148, 196
        res = {'z': ZD}
        done, written, vdone = set(), set(), set()

        def flush_writes():
            for n, grp in enumerate(groups):
                if n in written or not all(p in done for p in grp):
                    continue
                written.add(n)
                d = res[grp[0]]
                for p in grp[1:]:
                    for r in range(4):
                        a(f'v_cndmask_b32 v{d+r}, v{d+r}, v{res[p]+r}, s[{mregs[p]}:{mregs[p]+1}]')
                a(f'ds_write_b128 v{vWA0+n}, {vr(d, 4)}')
        for b in range(5):
            self.a_phi(acc, 5 + b, lambda rb, h: PK + 4 * b + 2 * rb + h)
            for (j, bb) in pieces:
                if bb == b and j not in vdone:
                    vdone.add(j)
                    for rb in range(2):
                        for h in range(2):
                            A = acc(10 + j, rb)
                            a(f'v_cvt_pk_bf16_f32 v{VF+4*j+2*rb+h}, v{A+2*h}, v{A+2*h+1}')
            flush_writes()
            free = [acc(5 + b, 0), acc(5 + b, 1), acc(10, 0) + 4 * (b - 1)]
            mine = [p for p in pieces if p[1] == b]
            mine.sort(key=lambda p: p[0] != p[1])
            for p in mine:
                res[p] = free.pop(0)
                a(f'v_mfma_f32_16x16x32_bf16 {vr(res[p], 4)}, {vr(PK+4*b, 4)}, {vr(VF+4*p[0], 4)}, 0')
                done.add(p)
            a(f'v_mfma_f32_16x16x32_bf16 {vr(ZD, 4)}, {vr(PK+4*b, 4)}, {vr(ZB+4*b, 4)}, ' + ('0' if b == 0 else vr(ZD, 4)))
        done.add('z')
        flush_writes()
        assert len(written) == len(groups)
        a('s_waitcnt lgkmcnt(0)')
        self.lds_signal(5, 250)
        self.lds_wait(5, 250)
        self.stamp(3)
        T = lambda h: 128 + 28 * h
        for h in range(2):
            for w in range(4):
                for k in range(3):
                    a(f'ds_read_b64 {vr(T(h)+6*w+2*k, 2)}, v{vPOS+3*h+1} offset:{6720*w+8*k}')
            a(f'v_mov_b32 v{T(h)+27}, s{S_TAG}')
        for h in range(2):
            a(f's_waitcnt lgkmcnt({12-12*h})')
            for k in range(3):
                a(f'v_pk_add_f32 {vr(T(h)+2*k, 2)}, {vr(T(h)+2*k, 2)}, {vr(T(h)+6+2*k, 2)}')
                a(f'v_pk_add_f32 {vr(T(h)+12+2*k, 2)}, {vr(T(h)+12+2*k, 2)}, {vr(T(h)+18+2*k, 2)}')
            for k in range(3):
                a(f'v_pk_add_f32 {vr(T(h)+2*k, 2)}, {vr(T(h)+2*k, 2)}, {vr(T(h)+12+2*k, 2)}')
            for k in range(3):
                a(f'v_cvt_pk_bf16_f32 v{T(h)+24+k}, v{T(h)+2*k}, v{T(h)+2*k+1}')
            if h:
                a('s_mov_b64 exec, 0x3f')
            a(f'buffer_store_dwordx4 {vr(T(h)+24, 4)}, v{vPOS+3*h}, s[{SRDW}:{SRDW+3}], s{S_KVO} offen sc1')
        a('s_mov_b64 exec, -1')
        self.stamp(4)
        self.g2_run()
        self.stamp(5)
        a('s_barrier')
        self.wo_rounds(VP, self.o['na1'], 5)
        a('s_waitcnt vmcnt(0)')
        self.stamp(6)
        a('s_barrier')
        self.finish()

    def a_pos_setup(self, vp):
        a = self.a
        a(f's_mul_i32 s{S_T0}, s{S_WAVE}, 40\nv_add_u32 v{vp}, s{S_T0}, v0\nv_mul_u32_u24 v{vp+1}, 24, v{vp}\nv_add_u32 v{vp+1}, {self.A_PART}, v{vp+1}')
        a(f'v_mul_u32_u24 v{vp+2}, 12, v{vp}\nv_add_u32 v{vp+2}, {self.A_KVB}, v{vp+2}\nv_lshlrev_b32 v{vp}, 4, v{vp}')
        a(f's_mul_i32 s{S_KVG}, s{S_G}, {16*4480}\ns_add_u32 s{S_KVG}, s{S_KVG}, {WS_KVP}\ns_mul_i32 s{S_KVO}, s{S_CH}, 4480\ns_add_u32 s{S_KVO}, s{S_KVO}, s{S_KVG}')

    def a_publish(self, vp, T):
        a = self.a
        self.execmask((1 << 40) - 1)
        for w in range(4):
            for k in range(3):
                a(f'ds_read_b64 {vr(T+6*w+2*k, 2)}, v{vp+1} offset:{6720*w+8*k}')
        a(f'v_mov_b32 v{T+27}, s{S_TAG}')
        a('s_waitcnt lgkmcnt(6)')
        for k in range(3):
            a(f'v_pk_add_f32 {vr(T+2*k, 2)}, {vr(T+2*k, 2)}, {vr(T+6+2*k, 2)}')
        a('s_waitcnt lgkmcnt(0)')
        for k in range(3):
            a(f'v_pk_add_f32 {vr(T+12+2*k, 2)}, {vr(T+12+2*k, 2)}, {vr(T+18+2*k, 2)}')
        for k in range(3):
            a(f'v_pk_add_f32 {vr(T+2*k, 2)}, {vr(T+2*k, 2)}, {vr(T+12+2*k, 2)}')
        for k in range(3):
            a(f'v_cvt_pk_bf16_f32 v{T+24+k}, v{T+2*k}, v{T+2*k+1}')
        a(f'buffer_store_dwordx4 {vr(T+24, 4)}, v{vp}, s[{SRDW}:{SRDW+3}], s{S_KVO} offen sc1')
        a('s_mov_b64 exec, -1')

    def kv_offsets(self):
        self.a(f's_mul_i32 s{S_KVG}, s{S_G}, {16*4480}\ns_add_u32 s{S_KVG}, s{S_KVG}, {WS_KVP}\ns_mul_i32 s{S_KVO}, s{S_CH}, 4480\ns_add_u32 s{S_KVO}, s{S_KVO}, s{S_KVG}')

    def pub_setup(self, vps):
        a = self.a
        for vp, code in zip(vps, (f's_lshl_b32 s{S_T0}, s{S_W}, 6', f's_mul_i32 s{S_T0}, s{S_W}, 6\ns_add_u32 s{S_T0}, s{S_T0}, 256')):
            a(code + f'\nv_add_u32 v{vp}, s{S_T0}, v0\nv_mul_u32_u24 v{vp+1}, 24, v{vp}\nv_add_u32 v{vp+1}, {self.A_PART}, v{vp+1}\nv_lshlrev_b32 v{vp}, 4, v{vp}')
        self.kv_offsets()

    def pub_run(self, vps, T0):
        a = self.a
        T = lambda h: T0 + 28 * h
        for h in range(2):
            for w in range(4):
                for k in range(3):
                    a(f'ds_read_b64 {vr(T(h)+6*w+2*k, 2)}, v{vps[h]+1} offset:{6720*w+8*k}')
            a(f'v_mov_b32 v{T(h)+27}, s{S_TAG}')
        for h in range(2):
            a(f's_waitcnt lgkmcnt({12-12*h})')
            for k in range(3):
                a(f'v_pk_add_f32 {vr(T(h)+2*k, 2)}, {vr(T(h)+2*k, 2)}, {vr(T(h)+6+2*k, 2)}')
                a(f'v_pk_add_f32 {vr(T(h)+12+2*k, 2)}, {vr(T(h)+12+2*k, 2)}, {vr(T(h)+18+2*k, 2)}')
            for k in range(3):
                a(f'v_pk_add_f32 {vr(T(h)+2*k, 2)}, {vr(T(h)+2*k, 2)}, {vr(T(h)+12+2*k, 2)}')
            for k in range(3):
                a(f'v_cvt_pk_bf16_f32 v{T(h)+24+k}, v{T(h)+2*k}, v{T(h)+2*k+1}')
            if h:
                a('s_mov_b64 exec, 0x3f')
            a(f'buffer_store_dwordx4 {vr(T(h)+24, 4)}, v{vps[h]}, s[{SRDW}:{SRDW+3}], s{S_KVO} offen {self.o.get("px", "sc1")}')
        a('s_mov_b64 exec, -1')

    def a1_loader(self):
        a = self.a
        SLOT = 47104
        VX, VW, VP = 1, 5, 13
        lf = self.o.get('lf', True)
        a.label('L_AL')
        self.x_offsets(24, False)
        self.start_chunk(S_KC)
        S_XO, S_WA, S_WB, S_E3, S_E7 = 94, 98, 99, 100, 101
        a(f's_lshr_b32 s{S_T2}, s{S_G}, 1\ns_lshr_b32 s{S_T3}, s{S_I4}, 1' if lf else f's_mov_b32 s{S_T2}, 0\ns_mov_b32 s{S_T3}, 0')
        a(f's_mov_b32 s{S_M+3}, s{S_T2}')

        def xoff(n):
            a(f's_add_u32 s{S_T0}, s{S_M+3}, {n}\ns_and_b32 s{S_T0}, s{S_T0}, 3\ns_lshl_b32 s{S_XO+n}, s{S_W}, 2\ns_add_u32 s{S_XO+n}, s{S_XO+n}, s{S_T0}\ns_lshl_b32 s{S_XO+n}, s{S_XO+n}, 10')
            a(f's_bitcmp1_b32 s{S_T0}, 0\ns_cselect_b64 vcc, -1, 0\nv_cndmask_b32 v{VX+n}, v24, v25, vcc')
            a(f's_lshr_b32 s{S_T0}, s{S_T0}, 1\ns_mul_i32 s{S_T0}, s{S_T0}, {16*1280}\nv_add_u32 v{VX+n}, s{S_T0}, v{VX+n}')
        for n in range(1 if lf else 4):
            xoff(n)
        a(f's_mul_i32 s{S_M+5}, s{S_W}, 7680\ns_add_u32 s{S_M+5}, s{S_M+5}, 16384\ns_mov_b32 s{S_SLOT}, 0')
        a(f's_lshl_b32 s{S_M+4}, s{S_T3}, 8\ns_lshl_b32 s{S_T0}, s{S_T3}, 12\ns_add_u32 s{S_WA}, s{S_M+5}, s{S_T0}\ns_xor_b32 s{S_T0}, s{S_T0}, 4096\ns_add_u32 s{S_WB}, s{S_M+5}, s{S_T0}')
        a(f's_cmp_eq_u32 s{S_T3}, 0\ns_cselect_b32 s{S_E3}, -1, 0\ns_cselect_b32 s{S_E7}, 0, -1')
        a(f's_lshr_b32 s{S_T0}, s{S_W}, 1\ns_lshl_b32 s{S_T0}, s{S_T0}, 5\ns_and_b32 s{S_T1}, s{S_W}, 1\ns_lshl_b32 s{S_T1}, s{S_T1}, 2')
        a(f's_add_u32 s{S_T0}, s{S_T0}, s{S_T1}\ns_mul_i32 s{S_T0}, s{S_T0}, 3840\ns_mul_i32 s{S_T1}, s{S_G}, 160\ns_add_u32 s{S_T5}, s{S_T0}, s{S_T1}')
        a(f's_movk_i32 s{S_M}, 3840\ns_movk_i32 s{S_T4}, 1120')

        def woff(n):
            a(f'v_add_u32 v250, {64*n}, v0\nv_xor_b32 v250, s{S_M+4}, v250\nv_mul_u32_u24 v251, 2185, v250\nv_lshrrev_b32 v251, 16, v251')
            a('v_mul_u32_u24 v252, 30, v251\nv_sub_u32 v252, v250, v252')
            a('v_mul_u32_u24 v253, 26, v252\nv_lshrrev_b32 v253, 8, v253')
            a('v_and_b32 v250, -4, v251\nv_add_u32 v251, v251, v250')
            a(f'v_lshlrev_b32 v252, 4, v252\nv_mad_u32_u24 v252, v253, s{S_T4}, v252\nv_mad_u32_u24 v252, v251, s{S_M}, v252')
            a(f'v_add_u32 v{VW+n}, s{S_T5}, v252')

        def xld(n):
            a(f's_add_u32 m0, s{S_T2}, s{S_XO+n}\nbuffer_load_dwordx4 v{VX+n}, s[{SRD0}:{SRD0+3}], s{S_M+1} offen lds')

        def wld(n, first):
            if first and n >= 1:
                woff(n)
            if n & 3 == 3:
                a(f's_mov_b32 exec_hi, s{S_E3 if n == 3 else S_E7}')
            a(f's_add_u32 m0, s{S_T3 if n < 4 else S_M+2}, {1024*(n & 3)}\nbuffer_load_dwordx4 v{VW+n}, s[{SRD1}:{SRD1+3}], s{S_KVB} offen lds')
            if n & 3 == 3:
                a('s_mov_b64 exec, -1')
        H1 = 5 if lf else 6

        def issue1(first=False):
            a(f's_lshl_b32 s{S_M+1}, s{S_KC}, 7\ns_mul_i32 s{S_KVB}, s{S_KC}, 245760')
            a(f's_mov_b32 s{S_T2}, s{S_SLOT}\ns_add_u32 s{S_T3}, s{S_SLOT}, s{S_WA}\ns_add_u32 s{S_M+2}, s{S_SLOT}, s{S_WB}')
            if first:
                woff(0)
                a('s_waitcnt lgkmcnt(0)')
                self.srd(SRD0, P_AX, 2048 * 1280)
                self.srd(SRD1, P_WQKV, 640 * 3840)
                self.stamp(1)
            for n in range(1 if lf else 4):
                xld(n)
            for n in range(4 if lf else 2):
                wld(n, first)
            self.next_kc()
            a(f's_add_u32 s{S_SLOT}, s{S_SLOT}, {SLOT}\ns_cmp_eq_u32 s{S_SLOT}, {3*SLOT}\ns_cselect_b32 s{S_SLOT}, 0, s{S_SLOT}')

        def issue2(first=False):
            for n in range(4 if lf else 2, 8):
                wld(n, first)
            if lf:
                for n in range(1, 4):
                    if first:
                        xoff(n)
                    xld(n)
        issue1(True)
        issue2(True)
        self.load_epoch()
        self.srd(SRD2, P_WO, 640 * 1280)
        self.srd(SRDW, P_WS, WS_SIZE)
        self.period_offsets(VP)
        if self.o.get('p7', False):
            self.a_pos_setup(20)
        else:
            self.kv_offsets()
        g2 = self.o.get('g2', True)
        if g2:
            a('v_and_b32 v250, 15, v0\nv_lshrrev_b32 v251, 4, v0')
            self.g2_setup()
        else:
            self.g1_setup(204)
        issue1()
        a(f's_waitcnt vmcnt({H1}) lgkmcnt(0)')
        self.make_tag()
        self.stamp(7)
        a('s_barrier')
        if g2:
            self.g2_early()
        self.slot_warm(35, 2)
        issue2()
        Lp = a.uniq('L_ld')
        a(f's_mov_b32 s{S_CNT}, 2')
        a.label(Lp)
        issue1()
        a(f's_add_u32 s{S_CNT}, s{S_CNT}, 1')
        self.stamp((S_CNT, 10))
        a(f's_waitcnt vmcnt({H1})')
        self.stamp((S_CNT, 25))
        a('s_barrier')
        self.stamp((S_CNT, 40))
        issue2()
        a(f's_cmp_lt_u32 s{S_CNT}, 10\ns_cbranch_scc1 {Lp}')
        ny = 1
        a(f's_lshl_b32 s{S_T0}, s{S_I4}, 2\ns_add_u32 s{S_T0}, s{S_T0}, s{S_W}\ns_mul_i32 s{S_T0}, s{S_T0}, {8*1280}\ns_mul_i32 s{S_T1}, s{S_G}, 160\ns_add_u32 s{S_T0}, s{S_T0}, s{S_T1}')
        a('v_lshrrev_b32 v250, 1, v0\nv_mul_u32_u24 v250, 1280, v250\nv_and_b32 v251, 1, v0\nv_lshl_add_u32 v250, v251, 7, v250\ns_mov_b64 exec, 0xffff')
        a(f'buffer_load_dword v254, v250, s[{SRD2}:{SRD2+3}], s{S_T0} offen\ns_mov_b64 exec, -1')
        if self.o['prewarm']:
            a(f's_lshl_b32 s{S_T0}, s{S_CH}, 2\ns_add_u32 s{S_T0}, s{S_T0}, s{S_W}\ns_lshl_b32 s{S_T0}, s{S_T0}, 3\ns_add_u32 s{S_T0}, s{S_T0}, s{S_G}')
            a(f's_mul_i32 s{S_T0}, s{S_T0}, 5120\ns_add_u32 s{S_T0}, s{S_T0}, {WS_O}\nv_lshlrev_b32 v250, 7, v0')
            self.execmask((1 << 40) - 1)
            a(f'buffer_load_dword v255, v250, s[{SRDW}:{SRDW+3}], s{S_T0} offen sc1\ns_mov_b64 exec, -1')
            ny += 1

        def wo_quad():
            a(f's_lshl_b32 s{S_T2}, s{S_T2}, 2\ns_add_u32 s{S_T2}, s{S_T2}, s{S_W}')
            a(f's_mul_i32 s{S_T0}, s{S_T2}, {32*1280}\ns_mul_i32 s{S_T1}, s{S_T2}, 5120\ns_add_u32 s{S_T1}, s{S_T1}, {self.A_WO}')
            for n in range(5):
                a(f's_add_u32 m0, s{S_T1}, {1024*n}\nbuffer_load_dwordx4 v{VP+n}, s[{SRD2}:{SRD2+3}], s{S_T0} offen lds')

        def wo_rounds(n0, n1):
            if n1 <= n0:
                return
            Lw = a.uniq('L_wo')
            a(f's_mov_b32 s{S_CNT}, {n0}')
            a.label(Lw)
            a(f's_add_u32 s{S_T2}, s{S_CNT}, s{S_I4}\ns_and_b32 s{S_T2}, s{S_T2}, 3\ns_add_u32 s{S_T2}, s{S_T2}, 1\ns_cmp_eq_u32 s{S_CNT}, 4\ns_cselect_b32 s{S_T2}, 0, s{S_T2}')
            wo_quad()
            a(f's_add_u32 s{S_CNT}, s{S_CNT}, 1\ns_cmp_lt_u32 s{S_CNT}, {n1}\ns_cbranch_scc1 {Lw}')
        a(f's_waitcnt vmcnt({ny})\ns_barrier')
        self.publish_xcc()
        staged = self.o.get('wos', False)
        if staged:
            Lw = a.uniq('L_wo')
            a(f's_cmp_eq_u32 s{S_I4}, 3\ns_cselect_b32 s{S_KC}, 0, s{S_I4}\ns_lshr_b32 s{S_SLOT}, s{S_G}, 2\ns_add_u32 s{S_SLOT}, s{S_SLOT}, 1\ns_mov_b32 s{S_CNT}, 0')
            a.label(Lw)
            a(f's_add_u32 s{S_T2}, s{S_KC}, s{S_SLOT}')
            wo_quad()
            a(f's_add_u32 s{S_KC}, s{S_KC}, 1\ns_cmp_eq_u32 s{S_KC}, 3\ns_cselect_b32 s{S_KC}, 0, s{S_KC}')
            a(f's_add_u32 s{S_CNT}, s{S_CNT}, 1\ns_cmp_lt_u32 s{S_CNT}, 3\ns_cbranch_scc1 {Lw}')
        else:
            wo_rounds(0, self.o['na1'])
        self.stamp(2)
        a('s_barrier')
        self.stamp(3)
        if self.o.get('p7', False):
            L3 = a.uniq('L_a3')
            a(f's_cmp_eq_u32 s{S_W}, 3\ns_cbranch_scc1 {L3}')
            self.a_publish(20, 100)
            a.label(L3)
        if staged:
            a(f's_mov_b32 s{S_T2}, 0')
            wo_quad()
        if g2:
            self.g2_run()
        else:
            self.g1_run(204)
        self.stamp(5)
        a('s_barrier')
        if staged:
            if self.o.get('wol', 'p') == 'p':
                a('s_barrier')
            a(f's_cmp_ge_u32 s{S_G}, 4\ns_cselect_b32 s{S_T2}, 1, 4')
            wo_quad()
            if self.o.get('wol', 'p') != 'p':
                a('s_barrier')
            a('s_waitcnt vmcnt(0)')
            self.stamp(6)
            a('s_barrier')
        else:
            wo_rounds(self.o['na1'], 5)
            a('s_waitcnt vmcnt(0)')
            self.stamp(6)
            a('s_barrier')
        self.finish()

    def a1_compute(self):
        a = self.a
        acc = lambda j, rb: 8 + 4 * (2 * j + rb)
        XF, WR = 128, 144
        vXA, vWA = 1, 3
        VC = 4
        a.label('L_AC')
        a('v_and_b32 v250, 15, v0\nv_lshrrev_b32 v251, 4, v0\nv_lshrrev_b32 v252, 1, v250\nv_xor_b32 v252, v252, v251')
        a(f's_lshl_b32 s{S_T0}, s{S_W}, 12\nv_lshlrev_b32 v252, 4, v252\nv_lshl_add_u32 v252, v250, 7, v252\nv_add_u32 v{vXA}, s{S_T0}, v252')
        a(f'v_xor_b32 v{vXA+1}, 64, v{vXA}')
        a('v_lshrrev_b32 v252, 2, v0\nv_mul_u32_u24 v252, 480, v252\nv_and_b32 v253, 3, v0\nv_lshl_add_u32 v252, v253, 3, v252')
        a(f'v_add_u32 v{vWA}, 16384, v252')
        a(f'v_mov_b32 v{VC}, {f2u(LOG2E):#x}\nv_mov_b32 v{VC+1}, {f2u(-1e-6*LOG2E):#x}\nv_mov_b32 v{VC+2}, {f2u(1e-6):#x}')
        for j in range(15):
            for rb in range(2):
                for r in range(4):
                    a(f'v_mov_b32 v{acc(j, rb)+r}, ' + (f'v{VC+2}' if j < 10 else '0'))
        head = lambda x: x // 20
        vKR, vZR, vWO, vPOS, vL16, vOUT, ZB, vWA0 = 207, 208, 209, 210, 213, 214, 216, 184

        def kvmask(j, b):
            return sum(1 << (16*g+i) for i in range(16) for g in range(4) if head(16*j+i) == head(16*b+4*g))
        zmask = 0x01f001f001f001f0
        groups = [[(0, 0)], [(1, 1)], [(2, 2)], [(1, 2), (3, 2)], [(3, 3)], [(0, 1), (4, 3)], [(2, 1), (2, 3)], [(4, 4)], [(1, 0), (3, 4), 'z']]
        mregs = {}
        a(f's_mul_i32 s{S_T0}, s{S_W}, 6720\ns_add_u32 s{S_T0}, s{S_T0}, {self.A_PART}\nv_lshlrev_b32 v252, 4, v251\nv_add_u32 v252, s{S_T0}, v252')
        a(f'v_mul_u32_u24 v253, 80, v250\nv_add_u32 v205, v252, v253')
        a(f'v_add_u32 v254, -4, v250\nv_lshlrev_b32 v253, 2, v254\nv_add_u32 v253, v253, v251\nv_mul_u32_u24 v253, 52, v253\nv_lshrrev_b32 v253, 8, v253')
        a(f'v_mul_u32_u24 v253, 1600, v253\nv_lshl_add_u32 v253, v254, 6, v253\nv_add_u32 v253, 1600, v253\nv_add_u32 v206, v252, v253')
        for n, grp in enumerate(groups):
            a(f'v_lshlrev_b32 v{vWA0+n}, 4, v0\nv_add_u32 v{vWA0+n}, {self.A_KVB}, v{vWA0+n}')
            for k, p in enumerate(grp):
                m = zmask if p == 'z' else kvmask(*p)
                if k:
                    mregs[p] = (94, 96, 98, 100, S_M + 6)[len(mregs)]
                    a(f's_mov_b32 s{mregs[p]}, {m & 0xffffffff:#x}\ns_mov_b32 s{mregs[p]+1}, {m >> 32:#x}')
                self.execmask(m)
                if p == 'z':
                    a(f'v_mov_b32 v{vWA0+n}, v206')
                else:
                    a(f'v_add_u32 v{vWA0+n}, {1280*p[0]+64*p[1]}, v205')
                a('s_mov_b64 exec, -1')
        a(f'v_lshlrev_b32 v252, 3, v251\nv_add_u32 v252, {self.A_KVB}, v252\nv_mul_u32_u24 v253, 40, v250\nv_add_u32 v{vKR}, v252, v253')
        a(f'v_and_b32 v253, 3, v250\nv_mul_u32_u24 v253, 800, v253\nv_add_u32 v{vZR}, v252, v253')
        a('v_lshrrev_b32 v252, 2, v0\nv_mul_u32_u24 v252, 160, v252\nv_and_b32 v253, 3, v0\nv_lshl_add_u32 v252, v253, 3, v252')
        a(f'v_add_u32 v{vWO}, {self.A_WO}, v252\nv_lshlrev_b32 v{vL16}, 4, v0')
        a('v_mov_b32 v253, 0x3f803f80')
        for b in range(5):
            a(f'v_cmp_eq_u32 vcc, {b+4}, v250\nv_cndmask_b32 v{ZB+4*b}, 0, v253, vcc')
            for r in range(1, 4):
                a(f'v_mov_b32 v{ZB+4*b+r}, v{ZB+4*b}')
        if self.o.get('p7', False):
            self.a_pos_setup(vPOS)
        else:
            self.pub_setup((vPOS, 200))
        a(f's_lshl_b32 s{S_BASE}, s{S_CH}, 2\ns_add_u32 s{S_BASE}, s{S_BASE}, s{S_W}\ns_mul_i32 s{S_BASE}, s{S_BASE}, 40960\ns_add_u32 s{S_BASE}, s{S_BASE}, {WS_O}')
        a('s_waitcnt lgkmcnt(0)')
        self.load_epoch()
        self.srd(SRDW, P_WS, WS_SIZE)
        self.out_prepare(vOUT, 0)
        a(f's_cmp_lg_u32 s{S_W}, 0\ns_cbranch_scc1 L_ac_nopf')
        self.code_prefetch('L_AL', 'L_BL')
        a.label('L_ac_nopf')
        a('s_waitcnt lgkmcnt(0)')
        self.make_tag()

        def wread(n, reg):
            ks, j = divmod(n, 15)
            for t in range(2):
                a(f'ds_read_b64_tr_b16 {vr(reg+2*t, 2)}, v{vWA} offset:{(32*ks+16*t)*480+32*j}')
            return 2
        self.mainloop(15, acc, XF, WR, vXA, [vWA], wread, lambda j: j < 5, 47104, 3, True)
        self.stamp(2)
        self.dump('a_acc', range(8, 128))
        if self.o.get('stg'):
            Ls = a.uniq('L_stg')
            for w_ in range(3):
                a(f's_cmp_le_u32 s{S_W}, {w_}\ns_cbranch_scc1 {Ls}\ns_nop {int(self.o["stg"])}')
            a.label(Ls)

        def phi(j, dst):
            T = 240
            for rb in range(2):
                A = acc(j, rb)
                t = T + 4 * rb
                for h in range(2):
                    a(f'v_pk_fma_f32 {vr(t+2*h, 2)}, {vr(A+2*h, 2)}, {vr(VC, 2)}, {vr(VC, 2)} op_sel:[0,0,1] op_sel_hi:[1,0,1]')
            for rb in range(2):
                A = acc(j, rb)
                t = T + 4 * rb
                for r in range(4):
                    a(f'v_exp_f32_e64 v{t+r}, v{t+r} clamp\nv_max_f32 v{A+r}, v{A+r}, v{VC+2}')
            for rb in range(2):
                A = acc(j, rb)
                t = T + 4 * rb
                for h in range(2):
                    a(f'v_pk_add_f32 {vr(A+2*h, 2)}, {vr(A+2*h, 2)}, {vr(t+2*h, 2)}')
            for rb in range(2):
                A = acc(j, rb)
                for h in range(2):
                    a(f'v_cvt_pk_bf16_f32 v{dst(rb, h)}, v{A+2*h}, v{A+2*h+1}')
        PK, VF, ZD = 128, 148, 196
        pieces = [(j, b) for b in range(5) for j in range(5) if kvmask(j, b)]
        assert len(pieces) == 13
        res = {'z': ZD}
        done = set()
        written = set()
        vdone = set()

        def flush_writes():
            for n, grp in enumerate(groups):
                if n in written or not all(p in done for p in grp):
                    continue
                written.add(n)
                d = res[grp[0]]
                for p in grp[1:]:
                    for r in range(4):
                        a(f'v_cndmask_b32 v{d+r}, v{d+r}, v{res[p]+r}, s[{mregs[p]}:{mregs[p]+1}]')
                a(f'ds_write_b128 v{vWA0+n}, {vr(d, 4)}')
        for b in range(5):
            phi(5 + b, lambda rb, h: PK + 4 * b + 2 * rb + h)
            for (j, bb) in pieces:
                if bb == b and j not in vdone:
                    vdone.add(j)
                    for rb in range(2):
                        for h in range(2):
                            A = acc(10 + j, rb)
                            a(f'v_cvt_pk_bf16_f32 v{VF+4*j+2*rb+h}, v{A+2*h}, v{A+2*h+1}')
            flush_writes()
            free = [acc(5 + b, 0), acc(5 + b, 1), acc(10, 0) + 4 * (b - 1)]
            mine = [p for p in pieces if p[1] == b]
            mine.sort(key=lambda p: p[0] != p[1])
            for p in mine:
                res[p] = free.pop(0)
                a(f'v_mfma_f32_16x16x32_bf16 {vr(res[p], 4)}, {vr(PK+4*b, 4)}, {vr(VF+4*p[0], 4)}, 0')
                done.add(p)
            a(f'v_mfma_f32_16x16x32_bf16 {vr(ZD, 4)}, {vr(PK+4*b, 4)}, {vr(ZB+4*b, 4)}, ' + ('0' if b == 0 else vr(ZD, 4)))
        done.add('z')
        flush_writes()
        assert len(written) == len(groups)
        a('s_waitcnt lgkmcnt(0)\ns_barrier')
        self.stamp(3)
        if self.o.get('p7', False):
            self.a_publish(vPOS, 128)
        else:
            self.pub_run((vPOS, 200), 128)
        self.stamp(4)
        self.xcc_issue(250)
        PQ = lambda rb, p: 48 + 12 * rb + 4 * p
        for j in range(5):
            phi(j, lambda rb, h: PQ(rb, j // 2) + 2 * (j & 1) + h)
        for rb in range(2):
            a(f'v_mov_b32 v{PQ(rb, 2)+2}, 0\nv_mov_b32 v{PQ(rb, 2)+3}, 0')
        OP = 72
        oplist = [('z', 0), ('z', 1), ('z', 2), (0, 0), (1, 0), (1, 1), (2, 0), (2, 1), (3, 1), (3, 2), (4, 1), (4, 2)]
        reads = []
        for n, (j, p) in enumerate(oplist):
            for t in range(2):
                b = 2 * p + t
                if j == 'z' and b < 5:
                    reads.append((OP + 4 * n + 2 * t, vZR, 800 + 32 * b, sum(1 << (16*g+i) for g in range(4) for i in range(16) if (i & 3) == head(16*b+4*g))))
                elif j != 'z' and (j, b) in pieces:
                    reads.append((OP + 4 * n + 2 * t, vKR, 640 * j + 32 * b, kvmask(j, b)))
                else:
                    a(f'v_mov_b64 {vr(OP+4*n+2*t, 2)}, 0')
        RA = 184
        a(f'v_mov_b32 v{RA}, {self.A_KVB+3360}\nv_mov_b64 v[246:247], 0\nds_write_b64 v{RA}, v[246:247]')
        for n, (dst, base, off, mask) in enumerate(reads):
            if n:
                a(f'v_mov_b32 v{RA+n}, {self.A_KVB+3360}')
            self.execmask(mask)
            a(f'v_add_u32 v{RA+n}, {off}, v{base}\ns_mov_b64 exec, -1')
        DEN = lambda rb: 8 + 4 * rb
        NUM = lambda j, rb: 128 + 4 * (2 * j + rb)
        for rb in range(2):
            for r in range(4):
                a(f'v_mov_b32 v{DEN(rb)+r}, v{VC+2}')
        a(f's_mov_b64 s[{S_M}:{S_M+1}], 0xffff\ns_mov_b32 s{S_M+2}, -1\ns_mov_b32 s{S_M+3}, 0\ns_mov_b32 s{S_M+4}, -1\ns_mov_b32 s{S_M+5}, 0xffff')
        a(f's_mul_i32 s{S_T2}, s{S_G}, 5120\ns_add_u32 s{S_T2}, s{S_T2}, s{S_BASE}')
        self.stamp(5)
        a('s_waitcnt lgkmcnt(0)\ns_barrier')
        self.stamp(10)
        ops = {k_: OP + 4 * n for n, k_ in enumerate(oplist)}
        for n, (dst, base, off, mask) in enumerate(reads):
            a(f'ds_read_b64 {vr(dst, 2)}, v{RA+n}')
        a('s_waitcnt lgkmcnt(13)')
        for p in range(3):
            for rb in range(2):
                d = vr(DEN(rb), 4)
                a(f'v_mfma_f32_16x16x32_bf16 {d}, {vr(ops[("z", p)], 4)}, {vr(PQ(rb, p), 4)}, {d}')
        a('s_waitcnt lgkmcnt(0)')
        for j in range(5):
            ps = [p for (jj, p) in oplist if jj == j]
            for k, p in enumerate(ps):
                for rb in range(2):
                    d = vr(NUM(j, rb), 4)
                    a(f'v_mfma_f32_16x16x32_bf16 {d}, {vr(ops[(j, p)], 4)}, {vr(PQ(rb, p), 4)}, ' + ('0' if k == 0 else d))
        RC = lambda rb, j: 16 + 6 * rb + j
        for rb in range(2):
            for r in range(4):
                a(f'v_rcp_f32 v{DEN(rb)+r}, v{DEN(rb)+r}')
        for rb in range(2):
            a(f'v_mov_b32 v{RC(rb, 0)}, v{DEN(rb)}\nv_mov_b32 v{RC(rb, 4)}, v{DEN(rb)+3}')
            for j in range(1, 4):
                a(f'v_cndmask_b32 v{RC(rb, j)}, v{DEN(rb)+j}, v{DEN(rb)+j-1}, s[{S_M+2*(j-1)}:{S_M+2*(j-1)+1}]')
        OF = 28
        ofreg = lambda j, rb: OF + (4 * (2 * (j // 2) + rb) + 2 * (j & 1) if j < 4 else 16 + 2 * rb)
        for j in range(5):
            for rb in range(2):
                N = NUM(j, rb)
                rc = RC(rb, j)
                sel = 'op_sel:[0,1] op_sel_hi:[1,1]' if rc & 1 else 'op_sel:[0,0] op_sel_hi:[1,0]'
                for h in range(2):
                    a(f'v_pk_mul_f32 {vr(N+2*h, 2)}, {vr(N+2*h, 2)}, {vr(rc & ~1, 2)} {sel}')
            for rb in range(2):
                N = NUM(j, rb)
                for h in range(2):
                    a(f'v_cvt_pk_bf16_f32 v{ofreg(j, rb)+h}, v{N+2*h}, v{N+2*h+1}')
            if j in (1, 3):
                for rb in range(2):
                    f = 2 * (j // 2) + rb
                    a(f'buffer_store_dwordx4 {vr(OF+4*f, 4)}, v{vL16}, s[{SRDW}:{SRDW+3}], s{S_T2} offen offset:{1024*f} {self.ix}')
            if j == 4:
                a(f's_add_u32 s{S_T2}, s{S_T2}, 4096\nbuffer_store_dwordx4 {vr(OF+16, 4)}, v{vL16}, s[{SRDW}:{SRDW+3}], s{S_T2} offen {self.ix}')
        self.stamp(6)
        for u in range(8):
            a(f's_xor_b32 s{S_T0}, s{S_G}, {u}\ns_mul_i32 s{4+u}, s{S_T0}, 5120\ns_add_u32 s{4+u}, s{4+u}, s{S_BASE}')
            a(f's_mul_i32 s{S_T0}, s{S_T0}, 12800\nv_add_u32 v{8+u}, s{S_T0}, v{vWO}')
        a(f'v_add_u32 v1, 4096, v{vL16}')
        self.out_soffsets()
        self.xcc_eval(250)
        lab = self.hop2(250)
        a('s_mov_b64 exec, -1')
        acc2 = lambda j, rb: 52 + 4 * (2 * j + rb)
        WR2 = 132
        q = Cnt(a, 'lgkmcnt', 15)
        vq = Cnt(a, 'vmcnt', 63)
        LEAD = 7
        rs = int(self.o.get('rs', 0)) if not self.o['wt'] else 0
        pool = list(range(116, 132, 4)) + list(range(172, 204, 4)) + list(range(216, 244, 4)) + list(range(16, 28, 4))
        if rs:
            a(f'v_mov_b64 v[244:245], {vr(OF+16, 2)}\nv_mov_b64 v[246:247], {vr(OF+18, 2)}')
            pool += pool[:6]
        else:
            pool += list(range(28, 44, 4))
            pool += pool[:2]
        areg = {(0, f): OF + 4 * f for f in range(5)}
        loads = []
        steps = []
        for p in range(4):
            ua, ub = 2 * p, 2 * p + 1
            for u in (ua, ub):
                for h in range(2):
                    steps.append((((u, 2 * h), (u, 2 * h + 1)), ((u, 2 * h), (u, 2 * h + 1))))
                    if u:
                        for f in (2 * h, 2 * h + 1):
                            areg[(u, f)] = pool.pop(0)
                            loads.append((u, f))
            steps.append((((ua, 4), (ub, 4)), ((ua, 4), (ub, 4))))
            if p == 0:
                areg[(1, 4)] = 48
                loads.append((1, 4))
            else:
                areg[(ua, 4)], areg[(ub, 4)] = 92 + 8 * (p - 1), 96 + 8 * (p - 1)
                loads += [(ua, 4), (ub, 4)]
        tail = self.o.get('tail', True)
        seq = [(ks, j) for ks in range(15) for j in range(5)]
        seq += [(ks, j) for j in range(5) for ks in range(15, 20)] if tail else [(ks, j) for ks in range(15, 20) for j in range(5)]

        def rd_w(m):
            if m >= len(seq):
                return
            ks, j = seq[m]
            for t in range(2):
                u, blk = steps[ks][1][t]
                a(f'ds_read_b64_tr_b16 {vr(WR2+4*(m % 10)+2*t, 2)}, v{8+u} offset:{2560*blk+32*j}')
                q.issue(m)

        def ld_o():
            if loads:
                u, f = loads.pop(0)
                a(f'buffer_load_dwordx4 {vr(areg[(u, f)], 4)}, v{1 if f == 4 else vL16}, s[{SRDW}:{SRDW+3}], s{4+u} offen offset:{1024*(f & 3)} sc1')
                vq.issue((u, f))
        self.stamp(11)
        a('s_barrier')
        self.stamp(12)
        for m in range(LEAD):
            rd_w(m)
        swapped = set()
        pend = []
        pa = int(self.o.get('pa', 0))
        for (m0, m1, second) in ((0, pa, 0), (pa, 100, 1)):
            start = len(a.lines)
            for m in range(m0, m1):
                ks, j = seq[m]
                fr = steps[ks][0]
                for f in fr:
                    if f[0]:
                        vq.wait(f)
                if m + 2 < 100 and seq[m + 2][0] % 5 == 4 and seq[m + 2][0] not in swapped:
                    k4 = seq[m + 2][0]
                    swapped.add(k4)
                    vq.wait(steps[k4][0][1])
                    r = areg[steps[k4][0][0]]
                    a(f'v_swap_b32 v{r+2}, v{r+4}\nv_swap_b32 v{r+3}, v{r+5}')
                if m % 2 == 0 or m == m0:
                    q.wait(min(m + 1 - (m & 1), 99))
                for rb in range(2):
                    d = vr(acc2(j, rb), 4)
                    a(f'v_mfma_f32_16x16x32_bf16 {d}, {vr(areg[fr[rb]], 4)}, {vr(WR2+4*(m % 10), 4)}, ' + ('0' if ks == 0 else d))
                rd_w(m + LEAD)
                if second and m % 2 == 1:
                    ld_o()
                if m == 36 and self.o.get('wos', False) and not self.o.get('two'):
                    a('s_barrier')
                if rs and rs <= m < rs + 5:
                    f = m - rs
                    a(f'buffer_store_dwordx4 {vr(OF+4*f if f < 4 else 244, 4)}, v{1 if f == 4 else vL16}, s[{SRDW}:{SRDW+3}], s4 offen offset:{1024*(f & 3)} sc1')
                    vq.issue('rs')
                if tail and m >= 75:
                    if m >= 82 or (m - 75) % 5 >= 2:
                        for _ in range(3 if len(pend) > 2 else 2):
                            if pend and (m - 75) % 5 >= 2:
                                a(pend.pop(0))
                    if (m - 75) % 5 == 4:
                        pend += self.out_block(acc2, vOUT, j)
            body = a.lines[start:]
            del a.lines[start:]
            a.lines += spread(body, tail=0) if body else []
            if not second:
                self.hop2_wait(250, lab)
                self.stamp(7)
                for _ in range(int(self.o.get('pl', 6))):
                    ld_o()
        assert not loads
        self.stamp(8)
        if tail:
            a('\n'.join(pend))
        else:
            self.out_stores(acc2, vOUT)
        if self.o['stamps'] or self.o.get('probe'):
            self.stamp(14)
            a('s_waitcnt vmcnt(0)')
        self.epoch_update(0)
        self.end_write_back()
        self.finish()

    B_SLOT = 36864
    B_RING = 16384
    B_G = 0
    B_PART1 = 10240
    B_PART2 = 13312
    B_XT = 20480

    def b_loader(self):
        a = self.a
        VX, VW, VP, VC = 1, 5, 13, 44
        a.label('L_BL')
        self.x_offsets(VX, True)
        self.start_chunk(S_KC)
        a(f's_mov_b32 s{S_M+6}, s{S_G}\ns_mov_b32 s{S_M+7}, 1')
        if self.o['bdir']:
            a(f's_bitcmp1_b32 s{S_I4}, 0\ns_cselect_b32 s{S_M+7}, -1, 1\ns_cselect_b32 s{S_T0}, 10, 0\ns_add_u32 s{S_M+6}, s{S_M+6}, s{S_T0}')
        a(f's_and_b32 s{S_T1}, s{S_W}, 1\ns_mul_i32 s{S_T0}, s{S_T1}, 40\ns_mul_i32 s{S_T2}, s{S_G}, 80\ns_add_u32 s{S_T0}, s{S_T0}, s{S_T2}\ns_mul_i32 s{S_T0}, s{S_T0}, 1280')
        a(f's_lshl_b32 s{S_T1}, s{S_T1}, 6')
        a('v_lshrrev_b32 v250, 4, v0\nv_and_b32 v251, 7, v0\nv_xor_b32 v250, v250, v251\nv_lshlrev_b32 v250, 4, v250')
        a(f'v_xor_b32 v250, s{S_T1}, v250\nv_xor_b32 v252, 64, v250')
        a(f'v_lshrrev_b32 v251, 3, v0\nv_mul_u32_u24 v251, 1280, v251\nv_add_u32 v251, s{S_T0}, v251')
        a('v_add_u32 v250, v250, v251\nv_add_u32 v252, v252, v251')
        a(f's_mul_i32 s{S_T2}, s{S_G}, {-16*1280 & 0xffffffff:#x}\ns_mul_i32 s{S_T3}, s{S_G}, {-64*1280 & 0xffffffff:#x}\ns_add_u32 s{S_T3}, s{S_T3}, {448*1280}')
        a(f's_bitcmp1_b32 s{S_W}, 0\ns_cselect_b32 s{S_T3}, s{S_T3}, s{S_T2}')
        for n in range(5):
            a(f'v_add_u32 v{VC+n}, {8*n*1280}, v{252 if n & 1 else 250}\nv_add_u32 v{VW+n}, s{S_T2 if n < 3 else S_T3}, v{VC+n}')
        a(f's_lshl_b32 s{S_M+4}, s{S_W}, 12\ns_mul_i32 s{S_M+5}, s{S_W}, 5120\ns_mov_b32 s{S_SLOT}, {self.B_RING}')
        a('s_waitcnt lgkmcnt(0)')
        self.srd(SRD0, P_BX, 2048 * 1280)
        a(f's_cmp_ge_u32 s{S_W}, 2')
        a(f's_cselect_b32 s{SRD1}, s{P_BIM}, s{P_BRE}\ns_cselect_b32 s{SRD1+1}, s{P_BIM+1}, s{P_BRE+1}\ns_mov_b32 s{SRD1+2}, 819200\ns_mov_b32 s{SRD1+3}, 0x20000')
        a(f's_cselect_b32 s{SRD2}, s{P_CIM}, s{P_CRE}\ns_cselect_b32 s{SRD2+1}, s{P_CIM+1}, s{P_CRE+1}\ns_mov_b32 s{SRD2+2}, 819200\ns_mov_b32 s{SRD2+3}, 0x20000')

        def issue():
            a(f's_lshl_b32 s{S_T0}, s{S_KC}, 7')
            a(f's_add_u32 s{S_T2}, s{S_SLOT}, s{S_M+4}\ns_add_u32 s{S_T3}, s{S_SLOT}, s{S_M+5}\ns_add_u32 s{S_T3}, s{S_T3}, 16384')
            for n in range(4):
                a(f's_add_u32 m0, s{S_T2}, {1024*n}\nbuffer_load_dwordx4 v{VX+n}, s[{SRD0}:{SRD0+3}], s{S_T0} offen lds')
            for n in range(5):
                a(f's_add_u32 m0, s{S_T3}, {1024*n}\nbuffer_load_dwordx4 v{VW+n}, s[{SRD1}:{SRD1+3}], s{S_T0} offen lds')
            self.next_kc()
            a(f's_add_u32 s{S_SLOT}, s{S_SLOT}, {self.B_SLOT}\ns_cmp_eq_u32 s{S_SLOT}, {self.B_RING+4*self.B_SLOT}\ns_cselect_b32 s{S_SLOT}, {self.B_RING}, s{S_SLOT}')
        self.stamp(1)
        if self.o['pp']:
            self.pp_x()
            if self.o['pp'] != 'x':
                self.dense_pf(SRD1, 100, f's_lshr_b32 s{S_T0}, s2, 3\ns_lshl_b32 s{S_T0}, s{S_T0}, 1\ns_and_b32 s{S_T1}, s{S_W}, 1\ns_add_u32 s{S_T0}, s{S_T0}, s{S_T1}\ns_mul_i32 s{S_T0}, s{S_T0}, 12800')
        issue()
        if self.o['pf']:
            self.pf_x()
            Lq = a.uniq('L_pfw')
            a(f's_lshr_b32 s{S_T0}, s{S_W}, 1\ns_and_b32 s{S_T1}, s{S_I4}, 1\ns_cmp_lg_u32 s{S_T0}, s{S_T1}\ns_cbranch_scc1 {Lq}')
            self.pf_chunk()
            a(f's_lshl_b32 s{S_T0}, s{S_T0}, 7\ns_and_b32 s{S_T1}, s{S_W}, 1\ns_mul_i32 s{S_T1}, s{S_T1}, 40\ns_mul_i32 s{S_T2}, s{S_G}, 80')
            a(f's_add_u32 s{S_T1}, s{S_T1}, s{S_T2}\ns_mul_i32 s{S_T1}, s{S_T1}, 1280\ns_add_u32 s{S_T0}, s{S_T0}, s{S_T1}\nv_mul_u32_u24 v246, 1280, v0')
            self.execmask((1 << 40) - 1)
            a(f'buffer_load_dword v245, v246, s[{SRD1}:{SRD1+3}], s{S_T0} offen\ns_mov_b64 exec, -1')
            a.label(Lq)
        self.load_epoch()
        self.srd(SRDW, P_WS, WS_SIZE)
        self.period_offsets(VP)
        a('v_and_b32 v20, 15, v0\nv_mul_u32_u24 v20, 48, v20\nv_and_b32 v21, 0x30, v0\nv_add_u32 v20, v20, v21\nv_lshlrev_b32 v21, 4, v0')
        a(f's_lshl_b32 s{S_KVO}, s{S_G}, 4\ns_add_u32 s{S_KVO}, s{S_KVO}, s{S_CH}\ns_mul_i32 s{S_KVO}, s{S_KVO}, 768\ns_add_u32 s{S_KVO}, s{S_KVO}, {WS_AGG}')
        self.slot_warm(6, 2)
        sm = int(self.o.get('smem', 0)) if self.o['prewarm'] else 0
        if sm:
            a(f's_lshl_b32 s{S_T0}, s{S_CH}, 2\ns_add_u32 s{S_T0}, s{S_T0}, s{S_W}\ns_mul_i32 s{S_T0}, s{S_T0}, 81920\ns_lshl_b32 s{S_T1}, s{S_G}, 13')
            a(f's_add_u32 s{S_T0}, s{S_T0}, s{S_T1}\ns_add_u32 s{S_T0}, s{S_T0}, {WS_H}\ns_add_u32 s94, s{P_WS}, s{S_T0}\ns_addc_u32 s95, s{P_WS+1}, 0')
            a('s_waitcnt lgkmcnt(0)')
            self.make_tag()
            self.smem_touch(64 - 9 * sm if sm < 7 else 1)
            self.loader_loop(issue, 9, sm)
        elif 'b' in self.o.get('mw', ''):
            a(f's_lshr_b32 s{S_T0}, s{S_CH}, 2\ns_lshl_b32 s{S_T0}, s{S_T0}, 5\ns_lshr_b32 s{S_T1}, s2, 3\ns_add_u32 s{S_T0}, s{S_T0}, s{S_T1}\ns_lshl_b32 s{S_T0}, s{S_T0}, 1')
            a(f's_and_b32 s{S_T1}, s{S_W}, 1\ns_add_u32 s{S_T0}, s{S_T0}, s{S_T1}\ns_mul_i32 s{S_T0}, s{S_T0}, {25*128}\ns_min_u32 s{S_T0}, s{S_T0}, {(6400-27)*128}')
            a(f's_add_u32 s94, s{SRD2}, s{S_T0}\ns_addc_u32 s95, s{SRD2+1}, 0')
            self.loader_loop(issue, 9, *((5, 5) if self.o.get('mw5', False) else (3, 9)))
            a('s_waitcnt lgkmcnt(0)')
            self.make_tag()
        else:
            self.loader_loop(issue, 9)
            a('s_waitcnt lgkmcnt(0)')
            self.make_tag()
        for m in range(4):
            a(f's_lshr_b32 s{S_T0}, s{S_TAG}, {8*m}\nv_mov_b32 v{40+m}, s{S_T0}')

        def c_chunks(n0, n1):
            if n1 <= n0:
                return
            Lc = a.uniq('L_bc')
            a(f's_mov_b32 s{S_CNT}, {n0}')
            a.label(Lc)
            a(f's_mul_i32 s{S_T0}, s{S_M+7}, s{S_CNT}\ns_add_u32 s{S_T0}, s{S_M+6}, s{S_T0}\ns_cmp_ge_u32 s{S_T0}, 10\ns_cselect_b32 s{S_T1}, 10, 0\ns_sub_u32 s{S_T0}, s{S_T0}, s{S_T1}\ns_lshl_b32 s{S_T0}, s{S_T0}, 7')
            a(f's_andn2_b32 s{S_T1}, 7, s{S_CNT}\ns_mul_i32 s{S_T1}, s{S_T1}, 20480\ns_add_u32 s{S_T1}, s{S_T1}, s{S_M+5}')
            for n in range(5):
                a(f's_add_u32 m0, s{S_T1}, {1024*n}\nbuffer_load_dwordx4 v{VC+n}, s[{SRD2}:{SRD2+3}], s{S_T0} offen lds')
            if n1 - n0 > 1:
                a(f's_add_u32 s{S_CNT}, s{S_CNT}, 1\ns_cmp_lt_u32 s{S_CNT}, {n1}\ns_cbranch_scc1 {Lc}')
        early = not self.o['prewarm'] or sm
        if sm:
            a(f's_lshl_b32 s{S_T0}, s{S_CH}, 2\ns_add_u32 s{S_T0}, s{S_T0}, s{S_W}\ns_mul_i32 s{S_T0}, s{S_T0}, 81920\ns_add_u32 s{S_T0}, s{S_T0}, {WS_H+65536}')
            a(f's_lshl_b32 s{S_T1}, s{S_G}, 11\ns_add_u32 s{S_T0}, s{S_T0}, s{S_T1}\nv_lshlrev_b32 v250, 7, v0\ns_mov_b64 exec, 0xffff')
            a(f'buffer_load_dword v255, v250, s[{SRDW}:{SRDW+3}], s{S_T0} offen sc1\ns_mov_b64 exec, -1')
            c_chunks(2, 3)
            ny = 6
        elif self.o['prewarm']:
            a(f's_lshl_b32 s{S_T0}, s{S_CH}, 2\ns_add_u32 s{S_T0}, s{S_T0}, s{S_W}\ns_mul_i32 s{S_T0}, s{S_T0}, 81920\ns_add_u32 s{S_T0}, s{S_T0}, {WS_H}')
            a(f's_lshl_b32 s{S_T1}, s{S_G}, 13\ns_add_u32 s{S_T1}, s{S_T0}, s{S_T1}\nv_lshlrev_b32 v250, 7, v0')
            a(f'buffer_load_dword v254, v250, s[{SRDW}:{SRDW+3}], s{S_T1} offen sc1\ns_lshl_b32 s{S_T1}, s{S_G}, 11\ns_add_u32 s{S_T0}, s{S_T0}, s{S_T1}\ns_add_u32 s{S_T0}, s{S_T0}, 65536\ns_mov_b64 exec, 0xffff')
            a(f'buffer_load_dword v255, v250, s[{SRDW}:{SRDW+3}], s{S_T0} offen sc1\ns_mov_b64 exec, -1')
            ny = 2
        else:
            c_chunks(2, 3)
            ny = 5
        a(f's_waitcnt vmcnt({ny})\ns_barrier')
        self.publish_xcc()
        if early:
            c_chunks(0, 2)
        self.stamp(2)
        a('s_barrier')
        self.stamp(3)
        Ln = a.uniq('L_bnp')
        a(f's_cmp_lg_u32 s{S_W}, 0\ns_cbranch_scc1 {Ln}')
        self.execmask((1 << 48) - 1)
        for w in range(4):
            a(f'ds_read_b128 {vr(24+4*w, 4)}, v20 offset:{self.B_PART1-self.B_G+768*w}')
        a(f's_movk_i32 s{S_T0}, 0xff\ns_waitcnt lgkmcnt(0)')
        for h in range(2):
            a(f'v_pk_add_f32 {vr(24+2*h, 2)}, {vr(24+2*h, 2)}, {vr(28+2*h, 2)}\nv_pk_add_f32 {vr(32+2*h, 2)}, {vr(32+2*h, 2)}, {vr(36+2*h, 2)}')
        for h in range(2):
            a(f'v_pk_add_f32 {vr(24+2*h, 2)}, {vr(24+2*h, 2)}, {vr(32+2*h, 2)}')
        for m in range(4):
            a(f'v_bfi_b32 v{24+m}, s{S_T0}, v{40+m}, v{24+m}')
        a(f'buffer_store_dwordx4 v[24:27], v21, s[{SRDW}:{SRDW+3}], s{S_KVO} offen sc1\ns_mov_b64 exec, -1')
        a.label(Ln)
        self.stamp(4)
        a(f's_lshl_b32 s{S_T0}, s{S_CH}, 2\ns_add_u32 s{S_T0}, s{S_T0}, s{S_W}\ns_mul_i32 s{S_T0}, s{S_T0}, {32*1280}')
        a(f's_add_u32 s{S_T1}, s{S_M+5}, {self.B_XT}')
        for n in range(5):
            a(f's_add_u32 m0, s{S_T1}, {1024*n}\nbuffer_load_dwordx4 v{VP+n}, s[{SRD0}:{SRD0+3}], s{S_T0} offen lds')
        n0 = 3 if early else 0
        n1 = n0 + self.o['nc1']
        c_chunks(n0, n1)
        a(f's_waitcnt vmcnt({5*(n1-n0)})\ns_barrier')
        self.stamp(5)
        n3 = min(6, n1 + self.o['nc2'])
        c_chunks(n1, n3)
        if self.o['bs']:
            a('s_barrier')
            c_chunks(n3, 8)
            a(f's_waitcnt vmcnt({5*(8-n3)})')
            n3 = 8
        else:
            a('s_waitcnt vmcnt(0)')
        self.stamp(6)
        a('s_barrier')
        assert n3 >= 3
        if self.o.get('bq'):
            a('s_barrier')
        if not self.o.get('x_nolate'):
            c_chunks(n3, 8)
        a('s_waitcnt vmcnt(0)\ns_barrier')
        if not self.o.get('x_nolate'):
            c_chunks(8, 10)
        a('s_waitcnt vmcnt(0)\ns_barrier')
        self.write_back()
        self.finish()

    def b_compute(self):
        a = self.a
        acc = lambda jj, rb: 8 + 4 * (2 * jj + rb)
        XF, WR = 88, 104
        vXA, vWA = 1, 3
        PA, PC, PAB, PWH, PA4, PA8, PWG, PD, SEL = 144, 154, 164, 184, 194, 204, 214, 234, 240
        a.label('L_BC')
        a('v_and_b32 v250, 15, v0\nv_lshrrev_b32 v251, 4, v0\nv_lshrrev_b32 v252, 1, v250\nv_xor_b32 v252, v252, v251')
        a(f's_lshl_b32 s{S_T0}, s{S_W}, 12\ns_add_u32 s{S_T0}, s{S_T0}, {self.B_RING}\nv_lshlrev_b32 v252, 4, v252\nv_lshl_add_u32 v252, v250, 7, v252\nv_add_u32 v{vXA}, s{S_T0}, v252')
        a(f'v_xor_b32 v{vXA+1}, 64, v{vXA}\nv_add_u32 v{vWA}, {16384+self.B_RING}, v252\nv_xor_b32 v{vWA+1}, 64, v{vWA}')
        a(f's_mul_i32 s{S_T0}, s{S_G}, 160\nv_lshlrev_b32 v252, 1, v250\nv_add_u32 v5, s{S_T0}, v252')
        a(f's_lshl_b32 s{S_T0}, s{S_G}, 7\nv_add_u32 v6, s{S_T0}, v252\ns_lshl_b32 s{S_T0}, s{S_G}, 5\ns_add_u32 s{S_T0}, s{S_T0}, 1024\nv_add_u32 v7, s{S_T0}, v252')
        LAM = lambda j: 88 + 2 * j
        LDT = lambda j: 98 + j
        for j in range(5):
            a(f'v_mov_b64 {vr(LAM(j), 2)}, 0\nv_mov_b32 v{LDT(j)}, 0\nv_mov_b32 v{PD+j}, 0')
        a('s_waitcnt lgkmcnt(0)')
        for p, reg in ((P_LDT, LDT), (P_LRE, LAM), (P_LIM, lambda j: LAM(j) + 1), (P_DSK, lambda j: PD + j)):
            self.srd(SRD0, p, 1280)
            for j in range(5):
                if p == P_DSK:
                    a(f'buffer_load_short_d16_hi v{reg(j)}, v5, s[{SRD0}:{SRD0+3}], 0 offen offset:{32*j}')
                else:
                    a(f'buffer_load_short_d16_hi v{reg(j)}, v{6 if j < 4 else 7}, s[{SRD0}:{SRD0+3}], 0 offen offset:{32*j if j < 4 else 0}')
        self.load_epoch()
        self.srd(SRDW, P_WS, WS_SIZE)
        self.tlb_touch(WS_H, 81920, [P_CRE, P_CIM])
        a(f's_cmp_lg_u32 s{S_W}, 0\ns_cbranch_scc1 L_bc_nopf')
        self.code_prefetch('L_BL', 'L_END')
        a.label('L_bc_nopf')
        for r in range(80):
            a(f'v_mov_b32 v{8+r}, 0')
        vPR, vPW, vL16, vGW, vGR, vXT, vGA, vOUT = 5, 6, 7, 239, 224, 249, 226, 140
        a(f's_mul_i32 s{S_T0}, s{S_W}, 768\nv_mul_u32_u24 v{vPR}, 48, v250')
        a(f'v_and_b32 v253, 1, v251\nv_lshlrev_b32 v253, 3, v253\nv_lshrrev_b32 v254, 1, v251\nv_lshl_add_u32 v253, v254, 2, v253')
        a(f'v_add3_u32 v{vPW}, v{vPR}, v253, s{S_T0}\nv_lshlrev_b32 v{vL16}, 4, v0')
        a(f's_mul_i32 s{S_T0}, s{S_W}, 2560\nv_mul_u32_u24 v252, 640, v251\nv_lshlrev_b32 v{vGR}, 3, v250\nv_add3_u32 v{vGW}, v252, v{vGR}, s{S_T0}')
        a('v_lshrrev_b32 v252, 2, v0\nv_mul_u32_u24 v252, 160, v252\nv_and_b32 v253, 3, v0\nv_lshl_add_u32 v252, v253, 3, v252')
        a(f's_mul_i32 s{S_T0}, s{S_W}, 5120\ns_add_u32 s{S_T0}, s{S_T0}, {self.B_XT}\nv_add_u32 v{vXT}, s{S_T0}, v252')
        a(f'v_mul_u32_u24 v252, 768, v251\nv_lshl_add_u32 v{vGA}, v250, 4, v252')
        a(f's_lshl_b32 s{S_KVG}, s{S_G}, 4\ns_lshl_b32 s{S_T1}, s{S_W}, 2\ns_add_u32 s{S_KVG}, s{S_KVG}, s{S_T1}\ns_mul_i32 s{S_KVG}, s{S_KVG}, 768\ns_add_u32 s{S_KVG}, s{S_KVG}, {WS_AGG}')
        a(f's_lshl_b32 s{S_BASE}, s{S_CH}, 2\ns_add_u32 s{S_BASE}, s{S_BASE}, s{S_W}\ns_mul_i32 s{S_BASE}, s{S_BASE}, 81920\ns_add_u32 s{S_BASE}, s{S_BASE}, {WS_H}')
        a(f's_lshl_b32 s{S_KVO}, s{S_G}, 13\ns_add_u32 s{S_KVO}, s{S_KVO}, s{S_BASE}')
        a(f's_lshl_b32 s{S_KVB}, s{S_G}, 11\ns_add_u32 s{S_KVB}, s{S_KVB}, s{S_BASE}\ns_add_u32 s{S_KVB}, s{S_KVB}, 65536')
        a('v_lshlrev_b32 v251, 3, v251\nv_sub_u32 v252, v250, v251\nv_mov_b32 v253, 0x3f80\nv_mov_b32 v254, 0x3f800000')
        for H in range(2):
            for m in range(4):
                a(f'v_cmp_eq_u32 vcc, {m-16*H}, v252\nv_cndmask_b32 v{SEL+4*H+m}, 0, v253, vcc')
                a(f'v_cmp_eq_u32 vcc, {m+4-16*H}, v252\nv_cndmask_b32 v{SEL+4*H+m}, v{SEL+4*H+m}, v254, vcc')
        NS = 104
        a(f's_lshl_b32 s{S_T0}, s{S_W}, 2\nv_lshrrev_b32 v251, 4, v0\nv_add_u32 v251, s{S_T0}, v251\nv_cvt_f32_u32 v252, v251')
        a(f'v_mul_f32 v{NS+1}, 0x41000000, v252\nv_sub_f32 v{NS}, 0x42f00000, v{NS+1}')
        a(f's_sub_u32 s{S_T0}, s{S_CH}, 1\nv_sub_u32 v253, s{S_T0}, v251\nv_max_i32 v253, 0, v253\nv_cvt_f32_i32 v253, v253\nv_mul_f32 v{NS+2}, 0x43000000, v253')
        a(f'v_cmp_gt_u32 s[{S_M+6}:{S_M+7}], s{S_CH}, v251')
        a(f'v_mov_b32 v108, {f2u(LOG2E):#x}\nv_mov_b32 v109, 0.15915494')

        def interleave(lists):
            for k in range(max(len(x) for x in lists)):
                for x in lists:
                    if k < len(x):
                        a(x[k])

        def cmac(d, c, p, x):
            if c is None:
                first = f'v_pk_mul_f32 {vr(d, 2)}, {vr(p, 2)}, {vr(x, 2)} op_sel:[0,0] op_sel_hi:[0,1]'
            else:
                first = f'v_pk_fma_f32 {vr(d, 2)}, {vr(p, 2)}, {vr(x, 2)}, {vr(c, 2)} op_sel:[0,0,0] op_sel_hi:[0,1,1]'
            return [first, f'v_pk_fma_f32 {vr(d, 2)}, {vr(p, 2)}, {vr(x, 2)}, {vr(d, 2)} op_sel:[1,1,0] op_sel_hi:[1,0,1] neg_lo:[1,0,0]']

        def bc(r):
            return vr(r & ~1, 2), ('op_sel:[0,1] op_sel_hi:[1,1]' if r & 1 else 'op_sel:[0,0] op_sel_hi:[1,0]')

        def setup(j):
            Z, T, T2 = 110 + 6 * j, 112 + 6 * j, 114 + 6 * j
            ldt, lam = LDT(j), LAM(j)

            def cpow(n, d):
                o = []
                src = Z
                if n is not None:
                    o.append(f'v_pk_mul_f32 {vr(T, 2)}, {vr(Z, 2)}, ' + ' '.join(bc(n)))
                    src = T
                o += [f'v_exp_f32 v{T}, v{src}', f'v_fract_f32 v{T+1}, v{src+1}', f'v_cos_f32 v{T2}, v{T+1}', f'v_sin_f32 v{T2+1}, v{T+1}',
                      f'v_pk_mul_f32 {vr(d, 2)}, {vr(T2, 2)}, ' + ' '.join(bc(T))]
                return o
            o = [f'v_mul_f32 v{ldt}, v108, v{ldt}', f'v_exp_f32 v{ldt}, v{ldt}', f'v_pk_mul_f32 {vr(Z, 2)}, {vr(lam, 2)}, v[108:109]',
                 f'v_cvt_pk_bf16_f32 v{ldt}, v{ldt}, v{ldt}', f'v_lshlrev_b32 v{ldt}, 16, v{ldt}',
                 f'v_pk_mul_f32 {vr(Z, 2)}, {vr(Z, 2)}, ' + ' '.join(bc(ldt))]
            o += cpow(None, PA + 2 * j)
            o += cmac(T, None, PA + 2 * j, PA + 2 * j) + cmac(PA4 + 2 * j, None, T, T) + cmac(PA8 + 2 * j, None, PA4 + 2 * j, PA4 + 2 * j)
            o += cpow(NS, PWG + 2 * j) + cpow(NS + 2, PWH + 2 * j)
            C = PC + 2 * j
            o += [f'v_pk_mul_f32 {vr(T, 2)}, {vr(lam, 2)}, {vr(lam, 2)}', f'v_add_f32 v{T2}, -1.0, v{PA+2*j}', f'v_add_f32 v{T}, v{T}, v{T+1}',
                  f'v_mov_b32 v{T2+1}, v{PA+2*j+1}', f'v_rcp_f32 v{T}, v{T}',
                  f'v_pk_mul_f32 {vr(C, 2)}, {vr(lam, 2)}, {vr(T2, 2)} op_sel:[0,0] op_sel_hi:[0,1]',
                  f'v_pk_fma_f32 {vr(C, 2)}, {vr(lam, 2)}, {vr(T2, 2)}, {vr(C, 2)} op_sel:[1,1,0] op_sel_hi:[1,0,1] neg_hi:[1,0,0]',
                  f'v_add_f32 v{T}, v{T}, v{T}', f'v_pk_mul_f32 {vr(C, 2)}, {vr(C, 2)}, ' + ' '.join(bc(T))]
            o += cpow(NS + 1, Z) + cmac(T, None, C, Z) + cmac(T2, None, PA4 + 2 * j, T)
            o += [f'v_pk_mov_b32 {vr(PAB+4*j, 2)}, {vr(T, 2)}, {vr(T2, 2)} op_sel:[0,0]', f'v_pk_mov_b32 {vr(PAB+4*j+2, 2)}, {vr(T, 2)}, {vr(T2, 2)} op_sel:[1,1]']
            return o
        a('s_waitcnt vmcnt(0)')
        interleave([setup(j) for j in range(5)])
        a('s_waitcnt lgkmcnt(0)')
        self.make_tag()
        self.dump('b_par', range(144, 248))

        def wread(n, reg):
            ks, jj = divmod(n, 10)
            a(f'ds_read_b128 {vr(reg, 4)}, v{vWA+ks} offset:{2048*jj}')
            return 1
        self.mainloop(10, acc, XF, WR, vXA, [vWA, vWA + 1], wread, lambda j: False, self.B_SLOT, 4, False)
        self.stamp(2)
        self.dump('b_acc', range(8, 88))
        U = lambda j, c, s: acc(j + 5 * c, s >> 1) + 2 * (s & 1)
        S = lambda j, c: 88 + 4 * j + 2 * c
        TT = lambda j, c: 108 + 4 * j + 2 * c
        sRE, sIM = 'op_sel:[0,0,0] op_sel_hi:[0,1,1]', 'op_sel:[1,0,0] op_sel_hi:[1,1,1]'

        def step(j, hre, him, ure, uim, tre, tim, dre, dim):
            return [f'v_pk_fma_f32 {vr(tre, 2)}, {vr(PA+2*j, 2)}, {vr(him, 2)}, {vr(ure, 2)} {sIM} neg_lo:[1,0,0] neg_hi:[1,0,0]',
                    f'v_pk_fma_f32 {vr(tim, 2)}, {vr(PA+2*j, 2)}, {vr(hre, 2)}, {vr(uim, 2)} {sIM}',
                    f'v_pk_fma_f32 {vr(dre, 2)}, {vr(PA+2*j, 2)}, {vr(hre, 2)}, {vr(tre, 2)} {sRE}',
                    f'v_pk_fma_f32 {vr(dim, 2)}, {vr(PA+2*j, 2)}, {vr(him, 2)}, {vr(tim, 2)} {sRE}']

        for s in range(1, 4):
            interleave([step(j, U(j, 0, 0) if s == 1 else S(j, 0), U(j, 1, 0) if s == 1 else S(j, 1), U(j, 0, s), U(j, 1, s),
                             TT(j, 0), TT(j, 1), S(j, 0), S(j, 1)) for j in range(5)])
        G = lambda j: 108 + 2 * j
        WT = 128
        interleave([[f'v_fma_f32 v{G(j)}, v{PA4+2*j}, v{S(j, 0)}, v{S(j, 0)+1}',
                     f'v_fma_f32 v{G(j)+1}, v{PA4+2*j}, v{S(j, 1)}, v{S(j, 1)+1}',
                     f'v_fma_f32 v{G(j)}, -v{PA4+2*j+1}, v{S(j, 1)}, v{G(j)}',
                     f'v_fma_f32 v{G(j)+1}, v{PA4+2*j+1}, v{S(j, 0)}, v{G(j)+1}'] for j in range(5)])
        a(f'v_mov_b32 v{WT+10}, 0\nv_mov_b32 v{WT+11}, 0')
        interleave([cmac(WT + 2 * j, None, PWG + 2 * j, G(j)) for j in range(5)])

        def reduce_write(part, WT):
            for Q in range(3):
                r = WT + 4 * Q
                a(f'v_permlane32_swap_b32 v{r}, v{r+1}\nv_permlane32_swap_b32 v{r+2}, v{r+3}')
            for Q in range(3):
                r = WT + 4 * Q
                a(f'v_add_f32 v{r}, v{r}, v{r+1}\nv_add_f32 v{r+2}, v{r+2}, v{r+3}')
            for Q in range(3):
                r = WT + 4 * Q
                a(f'v_permlane16_swap_b32 v{r}, v{r+2}')
            for Q in range(3):
                r = WT + 4 * Q
                a(f'v_add_f32 v{r}, v{r}, v{r+2}')
            for Q in range(3):
                a(f'ds_write_b32 v{vPW}, v{WT+4*Q} offset:{part+16*Q}')
        reduce_write(self.B_PART1, WT)
        for j in range(5):
            a(f'ds_write_b64 v{vGW}, {vr(G(j), 2)} offset:{128*j}')
        a('s_waitcnt lgkmcnt(0)\ns_barrier')
        self.stamp(3)
        self.xcc_issue(250)
        XR = 214
        SET = (108, 118, 128, 214)
        st_ = lambda k, j: SET[k % 4] + 2 * j
        P = lambda j: st_(0, j)

        def rd_g(k, n):
            for j in range(5):
                a(f'ds_read_b64 {vr(st_(k, j), 2)}, v{vGR} offset:{640*n+128*j}')
        rd_g(1, 0)
        rd_g(2, 1)
        for j in range(5):
            a(f'v_mov_b64 {vr(P(j), 2)}, 0')
        Lh, Lt = a.uniq('L_horner'), a.uniq('L_htail')
        a(f's_mov_b32 s{S_CNT}, s{S_W}\ns_cmp_eq_u32 s{S_W}, 0\ns_cbranch_scc1 {Lt}')
        a.label(Lh)
        for k in range(4):
            rd_g(k + 3, k + 2)
            a('s_waitcnt lgkmcnt(10)')
            interleave([cmac(st_(k + 1, j), st_(k + 1, j), PA8 + 2 * j, st_(k, j)) for j in range(5)])
        a(f'v_add_u32 v{vGR}, 2560, v{vGR}\ns_sub_u32 s{S_CNT}, s{S_CNT}, 1\ns_cmp_lg_u32 s{S_CNT}, 0\ns_cbranch_scc1 {Lh}')
        a.label(Lt)
        rd_g(3, 2)
        for k in range(3):
            a(f's_waitcnt lgkmcnt({10-5*k})')
            self.execmask(((1 << 64) - 1) & ~((1 << (16 * (k + 1))) - 1))
            interleave([cmac(st_(k + 1, j), st_(k + 1, j), PA8 + 2 * j, P(j)) + [f'v_mov_b64 {vr(P(j), 2)}, {vr(st_(k + 1, j), 2)}'] for j in range(5)])
        a('s_mov_b64 exec, -1')
        PB = lambda j: 118 + 2 * j
        interleave([[f'v_fma_f32 v{PB(j)}, v{PA4+2*j}, v{P(j)}, v{S(j, 0)}',
                     f'v_fma_f32 v{PB(j)+1}, v{PA4+2*j}, v{P(j)+1}, v{S(j, 1)}',
                     f'v_fma_f32 v{PB(j)}, -v{PA4+2*j+1}, v{P(j)+1}, v{PB(j)}',
                     f'v_fma_f32 v{PB(j)+1}, v{PA4+2*j+1}, v{P(j)}, v{PB(j)+1}'] for j in range(5)])
        for k, src in enumerate((P, PB)):
            interleave([[f'v_mul_f32 v{S(j, 0)+k}, v{PC+2*j}, v{src(j)}',
                         f'v_mul_f32 v{S(j, 1)+k}, v{PC+2*j}, v{src(j)+1}',
                         f'v_fma_f32 v{S(j, 0)+k}, -v{PC+2*j+1}, v{src(j)+1}, v{S(j, 0)+k}',
                         f'v_fma_f32 v{S(j, 1)+k}, v{PC+2*j+1}, v{src(j)}, v{S(j, 1)+k}'] for j in range(5)])
        GD = 128
        top, chk, ok, none, n1_ = (a.uniq(x) for x in ('L_bgp', 'L_bgc', 'L_bgok', 'L_bgn', 'L_bg1'))
        for r in range(0, 12, 2):
            a(f'v_mov_b64 {vr(GD+r, 2)}, 0')

        def ask():
            for Q in range(3):
                a(f'buffer_load_dwordx4 {vr(GD+4*Q, 4)}, v{vGA}, s[{SRDW}:{SRDW+3}], s{S_KVG} offen offset:{256*Q} sc1')
        early_ask = self.o.get('bask', False)
        if early_ask:
            a(f's_mov_b64 exec, s[{S_M+6}:{S_M+7}]\ns_cbranch_execz {n1_}')
            ask()
            a.label(n1_)
            a('s_mov_b64 exec, -1')
        for s in range(4):
            interleave([[f'v_pk_mul_f32 {vr(TT(j, 0), 2)}, {vr(PC+2*j, 2)}, {vr(U(j, 1, s), 2)} op_sel:[1,0] op_sel_hi:[1,1]',
                         f'v_pk_mul_f32 {vr(TT(j, 1), 2)}, {vr(PC+2*j, 2)}, {vr(U(j, 0, s), 2)} op_sel:[1,0] op_sel_hi:[1,1]',
                         f'v_pk_fma_f32 {vr(U(j, 0, s), 2)}, {vr(PC+2*j, 2)}, {vr(U(j, 0, s), 2)}, {vr(TT(j, 0), 2)} {sRE} neg_lo:[0,0,1] neg_hi:[0,0,1]',
                         f'v_pk_fma_f32 {vr(U(j, 1, s), 2)}, {vr(PC+2*j, 2)}, {vr(U(j, 1, s), 2)}, {vr(TT(j, 1), 2)} {sRE}'] for j in range(5)])
        self.stamp(4)
        for m in range(1, 4):
            a(f's_lshr_b32 s{S_M+m}, s{S_TAG}, {8*m}')
        a(f's_mov_b32 s{S_SPIN}, 0\ns_mov_b64 exec, s[{S_M+6}:{S_M+7}]\ns_cbranch_execz {none}')
        if early_ask:
            a(f's_branch {chk}')
        elif int(self.o.get('bob', 0)):
            a(f's_sleep {int(self.o["bob"])}')
        a.label(top)
        ask()
        a.label(chk)
        for Q in range(3):
            a(f's_waitcnt vmcnt({2-Q})')
            for m in range(4):
                tg = f's{S_TAG}' if m == 0 else f's{S_M+m}'
                if Q == 0 and m == 0:
                    a(f'v_xor_b32 v253, {tg}, v{GD}')
                else:
                    a(f'v_bitop3_b32 v253, v253, {tg}, v{GD+4*Q+m} bitop3:0xf6')
        a(f'v_and_b32 v253, 0xff, v253\nv_cmp_ne_u32 vcc, 0, v253\ns_cbranch_vccz {ok}')
        self.spin_check(top, ok)
        a.label(ok)
        a.label(none)
        a(f's_mov_b64 exec, -1\ns_movk_i32 s{S_T0}, 0xff00')
        for r in range(10):
            a(f'v_and_b32 v{GD+r}, s{S_T0}, v{GD+r}')
        WT = 108
        self.stamp(5)
        a(f'v_mov_b32 v{WT+10}, 0\nv_mov_b32 v{WT+11}, 0')
        interleave([cmac(WT + 2 * j, None, PWH + 2 * j, GD + 2 * j) for j in range(5)])
        reduce_write(self.B_PART2, WT)
        a('s_waitcnt lgkmcnt(0)\ns_barrier')
        self.stamp(10)
        HB = lambda w, Q: (108 if w < 3 else 184 - 36) + 12 * w + 4 * Q
        for w in range(4):
            for Q in range(3):
                a(f'ds_read_b128 {vr(HB(w, Q), 4)}, v{vPR} offset:{self.B_PART2+768*w+16*Q}')
        a('s_waitcnt lgkmcnt(6)')
        for j in range(5):
            a(f'v_pk_add_f32 {vr(HB(0, 0)+2*j, 2)}, {vr(HB(0, 0)+2*j, 2)}, {vr(HB(1, 0)+2*j, 2)}')
        a('s_waitcnt lgkmcnt(0)')
        for j in range(5):
            a(f'v_pk_add_f32 {vr(HB(2, 0)+2*j, 2)}, {vr(HB(2, 0)+2*j, 2)}, {vr(HB(3, 0)+2*j, 2)}')
        Hn = lambda j: HB(0, 0) + 2 * j
        for j in range(5):
            a(f'v_pk_add_f32 {vr(Hn(j), 2)}, {vr(Hn(j), 2)}, {vr(HB(2, 0)+2*j, 2)}')
        self.stamp(11)
        bRE, bIM = 'op_sel:[0,0,0] op_sel_hi:[1,0,1]', 'op_sel:[0,1,0] op_sel_hi:[1,1,1]'
        interleave([[f'v_pk_fma_f32 {vr(S(j, 0), 2)}, {vr(PAB+4*j, 2)}, {vr(Hn(j), 2)}, {vr(S(j, 0), 2)} {bRE}',
                     f'v_pk_fma_f32 {vr(S(j, 1), 2)}, {vr(PAB+4*j, 2)}, {vr(Hn(j), 2)}, {vr(S(j, 1), 2)} {bIM}',
                     f'v_pk_fma_f32 {vr(S(j, 0), 2)}, {vr(PAB+4*j+2, 2)}, {vr(Hn(j), 2)}, {vr(S(j, 0), 2)} {bIM} neg_lo:[1,0,0] neg_hi:[1,0,0]',
                     f'v_pk_fma_f32 {vr(S(j, 1), 2)}, {vr(PAB+4*j+2, 2)}, {vr(Hn(j), 2)}, {vr(S(j, 1), 2)} {bRE}'] for j in range(5)])
        PKD = lambda j, c: 154 + 8 * (j & 1) + 4 * c
        TD = lambda j, c, H: 108 + 16 * (j & 1) + 8 * H + 4 * c
        FR = lambda j, H: 174 + 8 * j + 4 * H

        def scan(js):
            for s in range(4):
                interleave([step(j, S(j, 0) if s == 0 else U(j, 0, s-1), S(j, 1) if s == 0 else U(j, 1, s-1),
                                 U(j, 0, s), U(j, 1, s), U(j, 0, s), U(j, 1, s), U(j, 0, s), U(j, 1, s)) for j in js])

        def pack(j):
            for c in range(2):
                n = '-' if c else ''
                for s in range(4):
                    a(f'v_cvt_pk_bf16_f32 v{PKD(j, c)+s}, {n}v{U(j, c, s)}, {n}v{U(j, c, s)+1}')
            for H in range(2):
                for c in range(2):
                    a(f'v_mfma_f32_16x16x32_bf16 {vr(TD(j, c, H), 4)}, {vr(PKD(j, c), 4)}, {vr(SEL+4*H, 4)}, 0')

        def emit(j):
            for H in range(2):
                for c in range(2):
                    for h in range(2):
                        a(f'v_cvt_pk_bf16_f32 v{FR(j, H)+2*c+h}, v{TD(j, c, H)+2*h}, v{TD(j, c, H)+2*h+1}')
                a(f'buffer_store_dwordx4 {vr(FR(j, H), 4)}, v7, s[{SRDW}:{SRDW+3}], s{S_KVO if j < 4 else S_KVB} offen offset:{1024*(2*(j & 1)+H)} {self.ix}')
            if j == 1:
                a(f's_add_u32 s{S_KVO}, s{S_KVO}, 4096')
        def xr_reads():
            for j in range(5):
                for rb in range(2):
                    a(f'ds_read_b64_tr_b16 {vr(XR+4*j+2*rb, 2)}, v{vXT} offset:{2560*rb+32*j}')
        if self.o.get('e2o', True):
            scan([0, 1])
            pack(0)
            pack(1)
            emit(0)
            xr_reads()
            scan([2, 3])
            emit(1)
            pack(2)
            pack(3)
            scan([4])
            emit(2)
            pack(4)
            emit(3)
            emit(4)
        else:
            scan([0, 1])
            pack(0)
            pack(1)
            xr_reads()
            scan([2, 3, 4])
            emit(0)
            pack(2)
            emit(1)
            pack(3)
            emit(2)
            pack(4)
            emit(3)
            emit(4)
        if self.o['bs']:
            a('s_waitcnt lgkmcnt(0)\ns_barrier')
        self.stamp(6)
        self.dump('b_h', range(8, 88))
        acc2 = lambda j, rb: 96 + 4 * (2 * j + rb)
        a(f's_mov_b32 s{S_T0}, 0xffff0000\ns_waitcnt lgkmcnt(0)')
        for j in range(5):
            for rb in range(2):
                A = acc2(j, rb)
                for h in range(2):
                    x = XR + 4 * j + 2 * rb + h
                    a(f'v_lshlrev_b32 v{A+2*h}, 16, v{x}\nv_and_b32 v{A+2*h+1}, s{S_T0}, v{x}')
                d = PD + j
                sel = 'op_sel:[0,1] op_sel_hi:[1,1]' if d & 1 else 'op_sel:[0,0] op_sel_hi:[1,0]'
                for h in range(2):
                    a(f'v_pk_mul_f32 {vr(A+2*h, 2)}, {vr(A+2*h, 2)}, {vr(d & ~1, 2)} {sel}')
        a('v_and_b32 v253, 15, v0\nv_lshrrev_b32 v254, 5, v0\nv_lshrrev_b32 v1, 1, v253\nv_xor_b32 v1, v1, v254\nv_lshlrev_b32 v1, 4, v1')
        a('v_lshl_add_u32 v1, v253, 7, v1\nv_bfe_u32 v254, v0, 4, 1\nv_lshl_add_u32 v1, v254, 3, v1')
        a(f'v_add_u32 v1, {7*20480}, v1')
        for ks in range(1, 4):
            a(f'v_xor_b32 v{1+ks}, {32*ks}, v1')
        self.out_prepare(vOUT, 2560)
        self.out_soffsets()
        self.xcc_eval(250)
        lab = self.hop2(250)
        a('s_mov_b64 exec, -1')
        self.stamp(12)
        a('s_barrier')
        self.stamp(13)
        HR, CR = 8, 56
        q = Cnt(a, 'lgkmcnt', 15)
        vq = Cnt(a, 'vmcnt', 63)
        LEAD = 7
        S_HP, S_END = S_T3, S_T2

        def rd_c(m, it, st, j):
            ks = st % 4
            for c in range(2):
                a(f'ds_read_b64 {vr(CR+4*(m % 10)+2*c, 2)}, v{1+ks} offset:{10240*c+2048*j}')
                q.issue((it, m))

        def ld_h(st, rb, it):
            a(f'buffer_load_dwordx4 {vr(HR+8*(st % 6)+4*rb, 4)}, v{6 if st & 2 else 7}, s[{SRDW}:{SRDW+3}], s{S_HP} offen offset:{2048*(st & 1)+1024*rb} {self.o.get("hx", "sc1")}')
            vq.issue((it, st))
        S_DIR, S_WRAP = S_KC, S_SLOT
        adv = [f's_add_u32 s{S_HP}, s{S_HP}, s{S_DIR}', f's_cmp_eq_u32 s{S_HP}, s{S_END}', f's_cselect_b32 s{S_HP}, s{S_WRAP}, s{S_HP}']
        lit = f'{-20480 & 0xffffffff:#x}'
        vadv = lambda base, d: {base + 4: [f'v_add_u32 v1, {d}, v1'], base + 5: [f'v_add_u32 v2, {d}, v2'],
                                base + 10: [f'v_add_u32 v3, {d}, v3'], base + 15: [f'v_add_u32 v4, {d}, v4']}
        for m in range(LEAD):
            rd_c(m, -1, *divmod(m, 5))
        a(f's_mov_b32 s{S_CNT}, 0\ns_mov_b32 s{S_M}, {lit}\nv_add_u32 v6, 4096, v7')
        a(f's_movk_i32 s{S_DIR}, 8192\ns_add_u32 s{S_END}, s{S_BASE}, 81920\ns_mov_b32 s{S_WRAP}, s{S_BASE}')
        if self.o['bdir']:
            a(f's_sub_u32 s{S_T0}, s{S_BASE}, 8192\ns_add_u32 s{S_T1}, s{S_BASE}, 73728\ns_bitcmp1_b32 s{S_I4}, 0')
            a(f's_cselect_b32 s{S_DIR}, {-8192 & 0xffffffff:#x}, s{S_DIR}\ns_cselect_b32 s{S_END}, s{S_T0}, s{S_END}\ns_cselect_b32 s{S_WRAP}, s{S_T1}, s{S_WRAP}')
        a(f's_sub_u32 s{S_HP}, s{S_KVO}, 4096')
        a('\n'.join(adv))

        pb = int(self.o.get('pb', 4))
        late = {pb: (2, 0), pb + 1: (2, 1), pb + 3: (3, 0), pb + 4: (3, 1), pb + 7: (4, 0), pb + 8: (4, 1)}
        tail = self.o.get('tail', True)
        pend = []

        def pairs(m0, m1, it, nper, areg, extra, loads, first={}, last=False):
            order = lambda m: divmod(m, 5) if not (last and tail and m >= 40) else (8 + (m - 40) % 4, (m - 40) // 4)
            for m in range(m0, m1):
                st, j = order(m)
                if loads:
                    vq.wait((it, st))
                if m % 2 == 0:
                    q.wait((it, m + 1))
                for rb in range(2):
                    d = vr(acc2(j, rb), 4)
                    a(f'v_mfma_f32_16x16x32_bf16 {d}, {vr(areg(st, rb), 4)}, {vr(CR+4*(m % 10), 4)}, {d}')
                mm = m + LEAD
                if mm < nper:
                    rd_c(mm, it, *order(mm))
                elif not last:
                    rd_c(mm - nper, it + 1, *divmod(mm - nper, 5))
                if loads and m < 40 + 20 * (not last) and j in ((0, 1) if last and st == 6 else (1, 3)):
                    rb = j if last and st == 6 else j >> 1
                    if st + 5 < 12:
                        ld_h(st + 5, rb, it)
                    elif not last:
                        ld_h(st + 5 - 12, rb, it + 1)
                if m in first:
                    ld_h(*first[m], 0)
                if first and m == pb + 6:
                    a('\n'.join(adv))
                for x in extra.get(m, []):
                    a(x)
                if last and tail and m >= 40:
                    if (m - 40) % 4 >= 1:
                        for _ in range(3):
                            if pend:
                                a(pend.pop(0))
                    if (m - 40) % 4 == 3:
                        pend.extend(self.out_block(acc2, vOUT, j))

        def emit_spread(fn, **kw):
            start = len(a.lines)
            fn()
            body = a.lines[start:]
            del a.lines[start:]
            return spread(body, **kw)
        for (m0, m1, second) in ((0, pb, 0), (pb, 20, 1)):
            if m1 > m0:
                a.lines += emit_spread(lambda: pairs(m0, m1, -1, 20, lambda st, rb: FR(st, rb), vadv(0, lit), False, late if second else {}), tail=0)
            if not second:
                self.hop2_wait(250, lab)
                self.stamp(7)
                for st in range(2):
                    for rb in range(2):
                        ld_h(st, rb, 0)
                if self.o.get('bq'):
                    a('s_barrier')

        def merge(*dcts):
            out = {}
            for dct in dcts:
                for k_, v_ in dct.items():
                    out.setdefault(k_, []).extend(v_)
            return out
        hreg = lambda st, rb: HR + 8 * (st % 6) + 4 * rb
        extra = merge(vadv(0, lit), vadv(20, lit), vadv(40, lit),
                      {14: adv[:2], 15: adv[2:], 25: ['s_barrier'], 34: adv[:2], 35: adv[2:],
                       47: [f's_add_u32 s{S_CNT}, s{S_CNT}, 1'], 54: adv[:2], 55: adv[2:], 57: [f's_cmp_lt_u32 s{S_CNT}, 2']})
        texts = [emit_spread(lambda: pairs(0, 60, it, 60, hreg, extra, True)) for it in range(2)]
        assert texts[0] == texts[1]
        L = a.uniq('L_bp2')
        a('.p2align 3')
        a.label(L)
        a.lines += texts[1]
        a(f's_cbranch_scc1 {L}')
        extra = merge(vadv(0, f'{7*20480}'), vadv(20, lit), {14: adv[:2], 15: adv[2:]})
        if tail:
            extra = merge(vadv(0, f'{7*20480}'), {14: adv[:2], 15: adv[2:], 24: [f'v_add_u32 v1, {lit}, v1'], 25: [f'v_add_u32 v2, {lit}, v2'],
                                                   30: [f'v_add_u32 v3, {lit}, v3'], 33: [f'v_add_u32 v4, {lit}, v4']})
        a.lines += emit_spread(lambda: pairs(0, 60, 2, 60, hreg, extra, True, last=True), tail=0)
        self.stamp(8)
        if tail:
            a('\n'.join(pend))
        else:
            self.out_stores(acc2, vOUT)
        if self.o['stamps'] or self.o.get('probe'):
            self.stamp(14)
            a('s_waitcnt vmcnt(0)')
        self.epoch_update(15)
        self.end_write_back()
        self.finish()

    def build(self):
        a = self.a
        self.prologue()
        two = self.o.get('two', False)
        if not two:
            self.A_PART, self.A_KVB, self.A_WO = 133120, 160000, 30720
        self.o['na1'] = int(self.o.get('na', 1 if two else 3))
        for side, parts in (('a', (self.a_loader, self.a_compute) if two else (self.a1_loader, self.a1_compute)), ('b', (self.b_loader, self.b_compute))):
            self.o['wt'] = self.wt0 is True or self.wt0 == side
            self.o['prewarm'] = (not self.o['wt'] and side in self.o.get('pw', 'ab')) or side in self.o.get('pwf', '')
            self.ix = 'sc1' if self.o['wt'] else self.o.get('ix', '')
            if side == 'b' and 'rotB' in self.o:
                self.o['rot'] = self.o['rotB']
            for p, r_ in zip(parts, 'lc'):
                self.role = side + r_
                self.sreg = 7 if self.role == 'al' and two else 248
                p()
        a.label('L_END')
        nt = self.o.get('nt', '')
        if nt:
            out = []
            for l in a.lines:
                if 'buffer_load' in l:
                    which = 'x' if 's[36:39]' in l else 'w' if 's[40:43]' in l else 'c' if 's[44:47]' in l else 'p' if ('buffer_load_dword v25' in l and ('v254, v250' in l or 'v255, v250' in l)) else ''
                    if which and which in nt and 'ushort' not in l:
                        l = l.replace(' lds', ' nt lds') if ' lds' in l else l + ' nt'
                out.append(l)
            a.lines = out
        if self.o.get('x_p2noload'):
            i0 = max(i for i, l in enumerate(a.lines) if l.startswith('L_fok'))
            i1 = min(i for i, l in enumerate(a.lines) if l.startswith('L_fok'))
            i2 = min(i for i, l in enumerate(a.lines) if l.startswith('L_BL'))
            a.lines = [l for i, l in enumerate(a.lines) if not ('buffer_load_dwordx4' in l and ' lds' not in l and (i > i0 or i1 < i < i2))]
        if self.o.get('x_noload'):
            a.lines = [l for l in a.lines if not (' lds' in l and ('s[36:39]' in l or 's[40:43]' in l))]
        lines, n = hazard_pass(a.lines)
        k = NAME + '_kernel'
        head = f'''; fused linear attention block + S5 scan, one persistent launch (256 workgroups, one per CU)
; @launch grid=(256,1,1) block=(512,1,1) lds=163840
.amdgcn_target "amdgcn-amd-amdhsa--gfx950"
.text
.globl {k}
.p2align 8
.type {k},@function
{k}:
'''
        tail = f'''    s_endpgm
.section .rodata,"a"
.p2align 6
.amdhsa_kernel {k}
  .amdhsa_next_free_vgpr 256
  .amdhsa_next_free_sgpr 102
  .amdhsa_accum_offset 256
  .amdhsa_group_segment_fixed_size 0
  .amdhsa_kernarg_size 120
  .amdhsa_user_sgpr_count 2
  .amdhsa_user_sgpr_kernarg_segment_ptr 1
  .amdhsa_system_sgpr_workgroup_id_x 1
.end_amdhsa_kernel
'''
        return head + '\n'.join(lines) + '\n' + tail, n


if __name__ == '__main__':
    opts = {}
    out = f'cdna_kernels/{NAME}.s'
    for arg in sys.argv[1:]:
        k, v = arg.split('=', 1)
        if k == 'out':
            out = v
        else:
            opts[k] = {'1': True, '0': False}.get(v, v)
    text, n = Gen(**opts).build()
    open(out, 'w').write(text)
    print(f'wrote {out}: {len(text.splitlines())} lines, {n} nops inserted')
```
